```python
import torch

def _softmax(x, axis=-1):
    return torch.softmax(x, dim=axis)

def _gelu(x):
    return torch.nn.functional.gelu(x, approximate='tanh')

def _silu(x):
    return torch.nn.functional.silu(x)

def _sigmoid(x):
    return torch.sigmoid(x)

def _layernorm(x, axis=-1, eps=1e-05):
    m = x.mean(dim=axis, keepdim=True)
    v = x.var(dim=axis, keepdim=True, unbiased=False)
    return (x - m) / torch.sqrt(v + eps)

def _scatter_add(tgt, idx, src, axis=0):
    return tgt.clone().index_add_(axis, idx, src)

def _segment_sum(src, seg, n):
    out = torch.zeros((n,) + src.shape[1:], dtype=src.dtype)
    return out.index_add_(0, seg, src)

def _pad(x, pw):
    flat = tuple((v for pair in reversed(pw) for v in pair))
    return torch.nn.functional.pad(x, flat)
kernel_name = 'adaLN_cond__linear_kernel_hedgehog__geglu_ffn__prompt'

def setup_inputs():

    _w = lambda a: (lambda t: t.to(torch.bfloat16) if t.is_floating_point() else t)(torch.as_tensor(a))

    def _A_setup():
        B, S, D, H = (1, 2048, 512, 32)
        Dh = D // H
        return {'x': _w((lambda *s: torch.randn(*s, dtype=torch.bfloat16) * 0.1)(B, S, D)), 'wqkv': _w((lambda *s: torch.randn(*s, dtype=torch.bfloat16) * 0.2)(D, 3 * D)), 'w_phi': _w((lambda *s: torch.randn(*s, dtype=torch.bfloat16) * 0.2)(H, Dh, Dh) * Dh ** (-0.5)), 'wo': _w((lambda *s: torch.randn(*s, dtype=torch.bfloat16) * 0.2)(D, D))}
    _A_in = _A_setup()

    def _B_setup():
        B, S, D, F = (1, 2048, 512, 1376)
        return {'x': _w((lambda *s: torch.randn(*s, dtype=torch.bfloat16) * 0.1)(B, S, D)), 'w_gate': _w((lambda *s: torch.randn(*s, dtype=torch.bfloat16) * 0.8)(D, F)), 'w_up': _w((lambda *s: torch.randn(*s, dtype=torch.bfloat16) * 0.8)(D, F)), 'w_down': _w((lambda *s: torch.randn(*s, dtype=torch.bfloat16) * 0.8)(F, D))}
    _B_in = _B_setup()
    return {'A_x': _A_in['x'], 'A_wqkv': _A_in['wqkv'], 'A_w_phi': _A_in['w_phi'], 'A_wo': _A_in['wo'], 'B_x': _B_in['x'], 'B_w_gate': _B_in['w_gate'], 'B_w_up': _B_in['w_up'], 'B_w_down': _B_in['w_down'], 'c': _w((lambda *s: torch.randn(*s, dtype=torch.bfloat16) * 0.4)(1, 512) * 8.0), 'w_mod': _w((lambda *s: torch.randn(*s, dtype=torch.bfloat16) * 0.4)(512, 6 * 512) * 512 ** (-0.5) * 8.0)}

def reference(A_x, A_wqkv, A_w_phi, A_wo, B_x, B_w_gate, B_w_up, B_w_down, c, w_mod):

    def _A_ref(x, wqkv, w_phi, wo):
        B, S, D = x.shape
        H = 32
        Dh = D // H
        qkv = (lambda x, *d: x.permute(*d))((x @ wqkv).reshape(B, S, 3, H, Dh), 2, 0, 3, 1, 4)
        q, k, v = (qkv[0], qkv[1], qkv[2])
        pq = torch.einsum('bhsd,hdf->bhsf', q, w_phi)
        pk = torch.einsum('bhsd,hdf->bhsf', k, w_phi)
        phi_q = torch.concatenate([_softmax(pq, axis=-1), _softmax(-pq, axis=-1)], axis=-1)
        phi_k = torch.concatenate([_softmax(pk, axis=-1), _softmax(-pk, axis=-1)], axis=-1)
        kv = torch.einsum('bhsf,bhsd->bhfd', phi_k, v)
        z = torch.einsum('bhsf->bhf', phi_k)
        num = torch.einsum('bhqf,bhfd->bhqd', phi_q, kv)
        den = torch.einsum('bhqf,bhf->bhq', phi_q, z)[..., None] + 1e-06
        o = num / den
        return (lambda x, *d: x.permute(*d))(o, 0, 2, 1, 3).reshape(B, S, D) @ wo

    def _B_ref(x, w_gate, w_up, w_down):
        return _gelu(x @ w_gate) * (x @ w_up) @ w_down
    x = A_x
    mod = (_silu(c) @ w_mod).reshape(c.shape[0], 6, 1, -1)
    sa, ca, ga, sb, cb, gb = (mod[:, 0].clone(), mod[:, 1].clone(), mod[:, 2].clone(), mod[:, 3].clone(), mod[:, 4].clone(), mod[:, 5].clone())
    h = _layernorm(x, axis=-1) * (1 + ca) + sa
    x = x + ga * _A_ref(h, A_wqkv, A_w_phi, A_wo)
    h = _layernorm(x, axis=-1) * (1 + cb) + sb
    x = x + gb * _B_ref(h, B_w_gate, B_w_up, B_w_down)
    return x
```

```python
import re

TRANS = ("v_exp_f32", "v_log_f32", "v_rcp_f32", "v_rsq_f32", "v_sqrt_f32", "v_sin_f32", "v_cos_f32")


class I:
    __slots__ = ("t", "kind", "tok", "region", "cmt")

    def __init__(s, t, kind="i", tok=None):
        s.t = t
        s.kind = kind
        s.tok = tok
        s.region = None


def regs(op):
    op = op.strip()
    op = op.replace("abs(", "").replace(")", "").lstrip("-").replace("|", "")
    m = re.fullmatch(r"([vas])(\d+)", op)
    if m:
        return {(m.group(1), int(m.group(2)))}
    m = re.fullmatch(r"([vas])\[(\d+):(\d+)\]", op)
    if m:
        return {(m.group(1), k) for k in range(int(m.group(2)), int(m.group(3)) + 1)}
    if op in ("vcc", "vcc_lo", "vcc_hi"):
        return {("s", "vcc")}
    if op in ("exec", "exec_lo", "exec_hi"):
        return {("s", "exec")}
    if op == "m0":
        return {("s", "m0")}
    return set()


def split_ops(rest):
    out, depth, cur = [], 0, ""
    for ch in rest:
        if ch in "[(":
            depth += 1
        if ch in "])":
            depth -= 1
        if ch == "," and depth == 0:
            out.append(cur.strip())
            cur = ""
        else:
            cur += ch
    if cur.strip():
        out.append(cur.strip())
    return out


class D:
    def __init__(s, text):
        text = text.split(";")[0].strip()
        parts = text.split(None, 1)
        s.mn = mn = parts[0]
        ops = split_ops(parts[1]) if len(parts) > 1 else []
        mods = ""
        if ops:
            last = ops[-1].split(None, 1)
            if len(last) > 1 and not ops[-1].startswith("hwreg"):
                ops[-1] = last[0]
                mods = last[1]
        s.mods = mods
        s.ops = ops
        s.dst, s.src = set(), set()
        s.cls = "other"
        s.passes = 0
        s.srcc = set()
        s.srcab = set()
        s.wide_store = set()
        R = [regs(o) for o in ops]
        if mn.startswith("v_mfma"):
            s.cls = "mfma"
            s.passes = 8 if "32x32" in mn else 4
            s.dst = R[0]
            s.srcab = R[1] | R[2]
            s.srcc = R[3]
            s.src = s.srcab | s.srcc
        elif mn.startswith("v_"):
            s.cls = "valu"
            if mn.startswith("v_cmp"):
                s.dst = R[0]
                s.src = set().union(*R[1:])
            elif mn.startswith("v_permlane") and "swap" in mn:
                s.dst = R[0] | R[1]
                s.src = R[0] | R[1]
            elif mn.startswith(("v_add_co", "v_sub_co", "v_addc_co", "v_subb_co")):
                s.dst = R[0] | R[1]
                s.src = set().union(*R[2:])
            elif mn == "v_nop":
                pass
            else:
                s.dst = R[0]
                s.src = set().union(*R[1:]) if len(R) > 1 else set()
                if mn.startswith(("v_fmac", "v_dot2c", "v_writelane")) or "_dpp" in mn:
                    s.src |= R[0]
        elif mn.startswith(("buffer_", "global_")):
            s.cls = "vmem"
            s.lds = "lds" in mods.split() or "_lds_" in mn
            if "load" in mn and not s.lds:
                s.dst = R[0]
                s.src = set().union(*R[1:])
            else:
                s.src = set().union(*R)
                if "store" in mn and ("x4" in mn or "x3" in mn):
                    s.wide_store = R[0] if mn.startswith("buffer_") else R[1]
        elif mn.startswith("ds_"):
            s.cls = "ds"
            if mn.startswith(("ds_read", "ds_bpermute", "ds_permute", "ds_swizzle")):
                s.dst = R[0]
                s.src = set().union(*R[1:])
            else:
                s.src = set().union(*R)
        elif mn.startswith(("s_load", "s_memtime", "s_memrealtime", "s_buffer_load")):
            s.cls = "smem"
            s.dst = R[0]
            s.src = set().union(*R[1:]) if len(R) > 1 else set()
        elif mn.startswith("s_"):
            s.cls = "salu"
            if mn.startswith(("s_cmp", "s_cbranch", "s_branch", "s_waitcnt", "s_nop", "s_barrier", "s_sleep", "s_endpgm", "s_setprio", "s_bitcmp")):
                s.src = set().union(*R) if R else set()
            else:
                s.dst = R[0] if R else set()
                s.src = set().union(*R[1:]) if len(R) > 1 else set()
                if "saveexec" in mn:
                    s.dst |= {("s", "exec")}
        s.states = 1
        if mn == "s_nop":
            s.states = int(ops[0], 0) + 1


def need(p, c):
    n = 0
    vec = lambda S: {r for r in S if r[0] in "va"}
    sca = lambda S: {r for r in S if r[0] == "s"}
    if p.cls == "valu":
        pv, ps = vec(p.dst), sca(p.dst)
        dot = p.mn.startswith("v_dot")
        if c.cls == "mfma" and pv & c.src:
            n = max(n, 3 if dot else 2)
        if c.cls == "valu":
            if pv & c.src or (dot and pv & c.dst):
                if p.mn.startswith(TRANS) and not c.mn.startswith(TRANS):
                    n = max(n, 1)
                if c.mn.startswith(("v_readlane", "v_readfirstlane")):
                    n = max(n, 1)
                if "_dpp" in c.mn or c.mn.startswith("v_permlane"):
                    n = max(n, 2)
                if dot:
                    same_c = c.mn == p.mn and not (pv & (regs(c.ops[1]) | regs(c.ops[2])))
                    if not same_c:
                        n = max(n, 3)
            if ps & c.src:
                n = max(n, 4 if c.mn.startswith(("v_readlane", "v_writelane")) else 2)
        if c.cls in ("vmem", "ds") and dot and pv & c.src:
            n = max(n, 3)
        if c.cls in ("vmem", "ds") and p.mn.startswith(TRANS) and pv & c.src:
            n = max(n, 1)
        if c.cls == "vmem" and ps & c.src:
            n = max(n, 5)
        if c.cls in ("salu", "smem") and ps & c.src:
            n = max(n, 1)
    if p.cls == "mfma":
        big = p.passes == 8
        if c.cls == "mfma":
            if p.dst & c.srcab:
                n = max(n, 12 if big else 8)
            if p.dst & c.srcc and not (p.dst == c.srcc and p.passes == c.passes):
                n = max(n, 10 if big else 6)
            if p.dst & c.dst and not (p.dst & c.srcc):
                n = max(n, 10 if big else 6)
        elif c.cls in ("valu", "vmem", "ds"):
            if p.dst & (c.src | c.dst):
                n = max(n, 12 if big else 8)
            if c.cls == "valu" and p.srcc & c.dst:
                n = max(n, 7 if big else 3)
    if p.cls == "salu" and ("s", "m0") in p.dst and c.cls == "vmem" and getattr(c, "lds", False):
        n = max(n, 1)
    if p.cls == "vmem" and p.wide_store & c.dst:
        n = max(n, 2)
    return n


class Prog:
    def __init__(s):
        s.L = []
        s.ntok = 0
        s.nlab = 0

    def e(s, t):
        i = I(t)
        s.L.append(i)
        return i

    def __call__(s, t):
        return s.e(t)

    def label(s, name):
        s.L.append(I(name, "l"))

    def newlabel(s, p="L"):
        Prog.cnt = getattr(Prog, "cnt", 0) + 1
        return f"{p}_{Prog.cnt}"

    def wv(s, tok):
        s.L.append(I("", "wv", tok))

    def wl(s, tok):
        s.L.append(I("", "wl", tok))

    def flush(s):
        s.L.append(I("", "flush"))

    def raw(s, t):
        s.L.append(I(t, "raw"))

    def rb(s):
        s.L.append(I("", "rb"))

    def re_(s):
        s.L.append(I("", "re"))

    def ext(s, other):
        s.L.extend(other.L if isinstance(other, Prog) else other)

    def finish(s):
        stack, nreg = [], 0
        for i in s.L:
            if i.kind == "rb":
                nreg += 1
                stack.append(nreg)
            elif i.kind == "re":
                stack.pop()
            i.region = tuple(stack)
        dec = {}
        for i in s.L:
            if i.kind == "i":
                dec[id(i)] = D(i.t)
        pos = {id(i): k for k, i in enumerate(s.L)}
        for k, i in enumerate(s.L):
            if i.kind in ("wv", "wl"):
                toks = i.tok if isinstance(i.tok, (list, tuple)) else [i.tok]
                p = max(pos[id(t)] for t in toks)
                assert p < k, "wait before its op"
                cls = "vmem" if i.kind == "wv" else "ds"
                for t in toks:
                    assert dec[id(t)].cls == cls, (t.t, cls)
                n = 0
                for j in s.L[p + 1:k]:
                    if j.kind == "i" and dec[id(j)].cls == cls and j.region == i.region[:len(j.region)]:
                        n += 1
                if cls == "vmem":
                    n = min(n, 63)
                    i.t = f"s_waitcnt vmcnt({n})"
                else:
                    n = min(n, 15)
                    i.t = f"s_waitcnt lgkmcnt({n})"
                i.kind = "i"
                dec[id(i)] = D(i.t)
        out = []
        hist = []
        nn = 0
        for i in s.L:
            if i.kind == "l":
                out.append(i.t + ":")
                continue
            if i.kind == "raw":
                out.append(i.t)
                continue
            if i.kind in ("rb", "re"):
                continue
            if i.kind == "flush":
                req = 0
                for (p, dist) in hist:
                    full = 0
                    if p.cls == "mfma":
                        full = 12 if p.passes == 8 else 8
                    elif p.cls == "valu":
                        full = 5 if any(r[0] == "s" for r in p.dst) else 3 if p.mn.startswith("v_dot") else 2
                    elif p.cls == "vmem" and p.wide_store:
                        full = 2
                    elif p.cls == "salu" and ("s", "m0") in p.dst:
                        full = 1
                    req = max(req, full - dist)
                if req > 0:
                    out.append(f"    s_nop {req-1}")
                    nn += 1
                hist = []
                continue
            d = dec[id(i)]
            req = 0
            for (p, dist) in hist:
                req = max(req, need(p, d) - dist)
            if req > 0:
                out.append(f"    s_nop {req-1}")
                nn += 1
                hist = [(p, dist + req) for (p, dist) in hist]
            out.append("    " + i.t)
            hist = [(p, dist + d.states) for (p, dist) in hist if dist + d.states < 13]
            hist.append((d, 0))
        s.nnops = nn
        return "\n".join(out)


def merge(main, fill, every=1, per=1, start=0, is_anchor=None):
    main = main.L if isinstance(main, Prog) else main
    fill = list(fill.L if isinstance(fill, Prog) else fill)
    if is_anchor is None:
        is_anchor = lambda i: i.kind == "i" and i.t.startswith("v_mfma")
    out, k, cnt, acc = [], 0, 0, 0.0
    for i in main:
        out.append(i)
        if is_anchor(i):
            cnt += 1
            if cnt > start and (cnt - start) % every == 0:
                acc += per
                while acc >= 1 and k < len(fill):
                    f = fill[k]
                    k += 1
                    if isinstance(f, (list, tuple)):
                        out.extend(f)
                        acc -= 1
                    else:
                        out.append(f)
                        if f.kind == "i" and not f.t.startswith("s_"):
                            acc -= 2 if f.t.startswith(TRANS) else 1
    for f in fill[k:]:
        if isinstance(f, (list, tuple)):
            out.extend(f)
        else:
            out.append(f)
    return out
```

```python
import sys
from asmlib import *

NAME = "adaLN_cond__linear_kernel_hedgehog__geglu_ffn__prompt"
STAMPS = "--stamps" in sys.argv
OUTF = [a for a in sys.argv[1:] if not a.startswith("--")]
OUTF = OUTF[0] if OUTF else f"cdna_kernels/{NAME}.s"

W_EPOCH = 0
W_FH = 0x1000
W_FKV = 0x2000
W_FO = 0x3000
W_FY = 0x4000
W_FACT = 0x5000
W_STAT1 = 0x8000
W_MODP = 0x10000
W_MODF = 0x40000
W_Z = 0x80000
W_KV = 0x100000
W_H = 0x200000
W_O = 0x400000
W_Y = 0x600000
W_ST2 = 0x800000
W_ACT = 0xA00000
W_STAMP = 0x1100000
WS_BYTES = 0x1200000
ACT_RT = 96 * 1024

K = 1024
L_WK, L_WV, L_WQ = 0, 32 * K, 64 * K
L_MODW = 96 * K
L_PL = 96 * K
L_WO, L_O = 0, 64 * K
L_Y = 0
L_MISC = 148 * K
L_SILU = L_MISC
L_AS = L_SILU + 512
L_WPHI = L_AS + 128
L_KVS = L_WPHI + 1024
L_MODL = L_KVS + 2304
L_EXT = L_MODL + 4096
L_KC = L_EXT + 2048
L_RS2 = L_KC + 1024
assert L_RS2 + 512 <= 160 * K
DCH = 12352
DPART = 3088

sX, sWQKV, sWO, sWG, sWU, sWD, sWM, sOUT, sWS = [f"s[{4+4*i}:{7+4*i}]" for i in range(9)]
sC, sPHI = "s[40:41]", "s[42:43]"
sTAG, sG, sJ, sW, sRB, sHP, sCR, sCC = [f"s{44+i}" for i in range(8)]
sGU = "s[52:55]"
sT = [f"s{56+i}" for i in range(8)]
sCNT = "s64"
sL2E = "s65"
sEX = "s[66:67]"
sKS = [f"s{68+i}" for i in range(11)]
sXCC = "s79"
SSTAMP0 = 80
SC = " sc1"
SPIN = 30000

p = Prog()
nstamp = [0]
stamp_names = []
want = None
for a in sys.argv:
    if a.startswith("--only="):
        want = a[7:].split(",")


def stamp(name, q=None):
    q = q or p
    if not STAMPS or (want is not None and name not in want):
        return
    k = SSTAMP0 + 2 + 2 * nstamp[0]
    if k + 1 > 101:
        return
    q(f"s_memtime s[{k}:{k+1}]")
    nstamp[0] += 1
    stamp_names.append(name)


def v(n, c=1):
    return f"v{n}" if c == 1 else f"v[{n}:{n+c-1}]"


def a(n, c=1):
    return f"a{n}" if c == 1 else f"a[{n}:{n+c-1}]"


def srd_lo(s):
    return int(s[2:s.index(":")])


def dma(q, vaddr, srd, soff, m0reg_or_imm, extra=""):
    q(f"s_mov_b32 m0, {m0reg_or_imm}")
    return q(f"buffer_load_dwordx4 {vaddr}, {srd}, {soff} offen{extra} lds")


def publish_flag(q, soff, wait=None):
    if wait is None:
        q("s_waitcnt vmcnt(0)")
    else:
        q.wv(wait)
    q("s_mov_b64 exec, 1")
    r = q(f"buffer_store_dword {vTAG}, off, {sWS}, {soff}{SC}")
    q("s_mov_b64 exec, -1")
    return r


def poll(q, vaddr, soff, vtmp):
    lp, dn = q.newlabel("POLL"), q.newlabel("DONE")
    q(f"s_mov_b32 {sCNT}, {SPIN}")
    q.flush()
    q.label(lp)
    q(f"buffer_load_dword {vtmp}, {vaddr}, {sWS}, {soff} offen sc1")
    q(f"s_sub_u32 {sCNT}, {sCNT}, 1")
    q(f"s_cbranch_scc1 {dn}")
    q("s_waitcnt vmcnt(0)")
    q(f"v_cmp_ne_u32 vcc, {sTAG}, {vtmp}")
    q(f"s_cbranch_vccnz {lp}")
    q.label(dn)
    q("s_waitcnt vmcnt(0)")


def unpack(q, src, lo, hi):
    q(f"v_lshlrev_b32 {lo}, 16, {src}")
    q(f"v_and_b32 {hi}, 0xffff0000, {src}")


vL, vL16, vTAG, vL4 = "v1", "v2", "v3", "v4"
vTRN, vTRV = "v5", "v6"
vR32 = "v7"
vHF = "v8"
vQ = "v9"
vD16 = "v10"
T0 = 12

p(f"s_cmp_ge_u32 s2, 256")
p(f"s_cbranch_scc1 END")
if STAMPS:
    p(f"s_memrealtime s[{SSTAMP0}:{SSTAMP0+1}]")
stamp("start")
for s_, off in ((sWS, 96), (sC, 64), (sWM, 72), (sX, 0), (sWQKV, 8), (sPHI, 16), (sWO, 24), (sWG, 40), (sWU, 48), (sWD, 56), (sOUT, 80)):
    lo = srd_lo(s_)
    p(f"s_load_dwordx2 s[{lo}:{lo+1}], s[0:1], {off}")
for s_, nb in ((sX, 2048 * 1024), (sWQKV, 512 * 3072), (sWO, 512 * 1024), (sWG, 512 * 2752), (sWU, 512 * 2752), (sWD, 1376 * 1024),
               (sWM, 512 * 6144), (sOUT, 2048 * 1024), (sWS, WS_BYTES), (sGU, 512 * 2752)):
    lo = srd_lo(s_)
    p(f"s_mov_b32 s{lo+2}, {nb}")
    p(f"s_mov_b32 s{lo+3}, 0x20000")
p(f"v_lshrrev_b32 v12, 6, v0")
p(f"v_and_b32 {vL}, 63, v0")
p(f"v_readfirstlane_b32 {sW}, v12")
p(f"s_and_b32 {sG}, s2, 7")
p(f"s_lshr_b32 {sJ}, s2, 3")
p(f"s_lshr_b32 {sRB}, {sJ}, 4")
p(f"s_and_b32 {sHP}, {sJ}, 15")
p(f"s_lshr_b32 {sCR}, {sJ}, 3")
p(f"s_and_b32 {sCC}, {sJ}, 7")
p(f"s_mov_b32 {sL2E}, 0x3fb8aa3b")
p(f"s_getreg_b32 {sXCC}, hwreg(HW_REG_XCC_ID, 0, 4)")
p(f"v_lshlrev_b32 {vL16}, 4, {vL}")
p(f"v_lshlrev_b32 {vL4}, 2, {vL}")
p(f"v_and_b32 {vR32}, 31, {vL}")
p(f"v_lshrrev_b32 {vHF}, 5, {vL}")
p(f"v_lshrrev_b32 {vQ}, 4, {vL}")
p(f"v_and_b32 {vD16}, 15, {vL}")
p(f"v_bfe_u32 v12, {vL}, 2, 2")
p(f"v_lshlrev_b32 v12, 6, v12")
p(f"v_lshl_add_u32 v12, {vHF}, 9, v12")
p(f"v_and_b32 v13, 3, {vL}")
p(f"v_and_b32 v14, 1, {vQ}")
p(f"v_lshl_add_u32 v15, v14, 2, v13")
p(f"v_lshl_add_u32 {vTRN}, v15, 3, v12")
p(f"v_and_b32 v16, 1, v15")
p(f"v_lshrrev_b32 v17, 1, v15")
p(f"v_lshl_add_u32 v16, v16, 2, v17")
p(f"v_lshl_add_u32 {vTRV}, v16, 3, v12")
vAM, vAX, vAW, vAS = "v20", "v21", "v22", "v23"
p(f"v_lshrrev_b32 v12, 2, {vL}")
p(f"v_mul_u32_u24 v14, 6144, v12")
p(f"v_lshrrev_b32 v15, 1, v13")
p(f"v_lshl_add_u32 v14, v15, 10, v14")
p(f"v_and_b32 v15, 1, v13")
p(f"v_lshl_add_u32 {vAM}, v15, 4, v14")
p(f"v_mul_u32_u24 v14, 3072, v12")
p(f"v_lshl_add_u32 {vAW}, v13, 4, v14")
p(f"v_lshlrev_b32 v14, 10, {vR32}")
p(f"v_lshl_add_u32 {vAX}, {vHF}, 4, v14")
p(f"v_lshrrev_b32 v14, 3, {vL}")
p(f"v_and_b32 v15, 7, {vL}")
p(f"v_lshlrev_b32 v14, 10, v14")
p(f"v_lshl_add_u32 {vAS}, v15, 4, v14")
p(f"s_lshl_b32 {sT[0]}, {sG}, 7")
p(f"v_lshl_add_u32 v24, {vR32}, 2, {sT[0]}")
p("s_waitcnt lgkmcnt(0)")
stamp("kernarg")
lo = srd_lo(sWS)
p(f"s_load_dword {sTAG}, s[{lo}:{lo+1}], {W_EPOCH}")

vXS = 32
vXR = 64
LA3, LA_J = "A_W3", "A_J1"
p(f"s_cmp_eq_u32 {sW}, 3")
p(f"s_cbranch_scc1 {LA3}")
p.rb()
tc = p(f"global_load_dword v25, v24, {sC}")
p(f"s_mul_i32 {sT[0]}, {sG}, {64*6144}")
p(f"s_lshl_b32 {sT[1]}, {sW}, 11")
p(f"s_add_u32 {sT[0]}, {sT[0]}, {sT[1]}")
p(f"s_lshl_b32 {sT[1]}, {sJ}, 5")
p(f"s_add_u32 {sT[0]}, {sT[0]}, {sT[1]}")
p(f"s_lshl_b32 {sT[2]}, {sW}, 12")
p(f"s_add_u32 {sT[2]}, {sT[2]}, {L_MODW}")
for n in range(4):
    tm = dma(p, vAM, sWM, sT[0], sT[2])
    if n < 3:
        p(f"s_add_u32 {sT[0]}, {sT[0]}, {16*6144}")
        p(f"s_add_u32 {sT[2]}, {sT[2]}, 1024")
p(f"s_branch {LA_J}")
p.re_()
p.label(LA3)
p.rb()
p(f"s_lshl_b32 {sT[0]}, {sG}, 18")
p(f"s_lshl_b32 {sT[1]}, {sJ}, 13")
p(f"s_add_u32 {sT[0]}, {sT[0]}, {sT[1]}")
for n in range(8):
    tx = p(f"buffer_load_dwordx4 {v(vXR+4*n,4)}, {vAS}, {sX}, {sT[0]} offen offset:{128*n}")
p(f"s_lshl_b32 {sT[1]}, {sHP}, 10")
p(f"v_add_u32 v25, {sT[1]}, {vL16}")
p(f"s_mov_b32 m0, {L_WPHI}")
p(f"global_load_lds_dwordx4 v25, {sPHI}")
p.re_()
p.label(LA_J)
p(f"s_lshl_b32 {sT[0]}, {sG}, 18")
p(f"s_lshl_b32 {sT[1]}, {sW}, 16")
p(f"s_add_u32 {sT[0]}, {sT[0]}, {sT[1]}")
p(f"s_lshl_b32 {sT[1]}, {sJ}, 5")
p(f"s_add_u32 {sT[0]}, {sT[0]}, {sT[1]}")
p(f"s_add_u32 {sT[1]}, {sT[0]}, 32768")
first_common = p(f"buffer_load_dwordx4 {v(vXS,4)}, {vAX}, {sX}, {sT[0]} offen")
p(f"buffer_load_dwordx4 {v(vXS+4,4)}, {vAX}, {sX}, {sT[1]} offen")


def wqkv_dma(q, part, lbase):
    q(f"s_mul_i32 {sT[0]}, {sW}, {128*3072}")
    q(f"s_lshl_b32 {sT[1]}, {sHP}, 6")
    q(f"s_add_u32 {sT[0]}, {sT[0]}, {sT[1]}")
    q(f"s_add_u32 {sT[0]}, {sT[0]}, {part*1024}")
    q(f"s_lshl_b32 {sT[2]}, {sW}, 13")
    q(f"s_add_u32 {sT[2]}, {sT[2]}, {lbase}")
    for n in range(8):
        t = dma(q, vAW, sWQKV, sT[0], sT[2])
        if n < 7:
            q(f"s_add_u32 {sT[0]}, {sT[0]}, {16*3072}")
            q(f"s_add_u32 {sT[2]}, {sT[2]}, 1024")
    return t


wqkv_dma(p, 1, L_WK)
wqkv_dma(p, 2, L_WV)
NCOMMON = 18
p("s_waitcnt lgkmcnt(0)")
p(f"s_add_u32 {sTAG}, {sTAG}, 0x9E3779B1")
p(f"v_mov_b32 {vTAG}, {sTAG}")
LB3, LB_J = "A_W3b", "A_J2"
p(f"s_cmp_eq_u32 {sW}, 3")
p(f"s_cbranch_scc1 {LB3}")
p.rb()
p(f"s_waitcnt vmcnt({NCOMMON+4})")
unpack(p, "v25", "v26", "v27")
for r in (26, 27):
    p(f"v_mul_f32 v{r+2}, 0xbfb8aa3b, v{r}")
for r in (28, 29):
    p(f"v_exp_f32 v{r}, v{r}")
for r in (28, 29):
    p(f"v_add_f32 v{r}, 1.0, v{r}")
for r in (28, 29):
    p(f"v_rcp_f32 v{r}, v{r}")
for r in (26, 27):
    p(f"v_mul_f32 v{r}, v{r}, v{r+2}")
p("v_cvt_pk_bf16_f32 v26, v26, v27")
p(f"s_lshl_b32 {sT[0]}, {sW}, 7")
p(f"s_add_u32 {sT[0]}, {sT[0]}, {L_SILU}")
p(f"v_lshl_add_u32 v27, {vR32}, 2, {sT[0]}")
p(f"v_lshl_add_u32 v28, {vHF}, 4, {sT[0]}")
p("ds_write_b32 v27, v26")
for s_ in range(4):
    p(f"ds_read_b128 {v(64+4*s_,4)}, v28 offset:{32*s_}")
p(f"s_lshl_b32 {sT[0]}, {sW}, 12")
p(f"s_add_u32 {sT[0]}, {sT[0]}, {L_MODW}")
p(f"v_add_u32 v29, {sT[0]}, {vTRN}")
p(f"s_waitcnt vmcnt({NCOMMON})")
stamp("wmod")
tr = []
for s_ in range(4):
    p(f"ds_read_b64_tr_b16 {v(80+4*s_,2)}, v29 offset:{1024*s_}")
    tr.append(p(f"ds_read_b64_tr_b16 {v(82+4*s_,2)}, v29 offset:{1024*s_+256}"))
for s_ in range(4):
    p.wl(tr[s_])
    p(f"v_mfma_f32_32x32x16_bf16 {v(96,16)}, {v(64+4*s_,4)}, {v(80+4*s_,4)}, {'0' if s_==0 else v(96,16)}")
p(f"s_lshl_b32 {sT[0]}, {sJ}, 3")
p(f"s_add_u32 {sT[0]}, {sT[0]}, {sG}")
p(f"s_mul_i32 {sT[0]}, {sT[0]}, 768")
p(f"s_lshl_b32 {sT[1]}, {sW}, 8")
p(f"s_add_u32 {sT[0]}, {sT[0]}, {sT[1]}")
p(f"s_add_u32 {sT[0]}, {sT[0]}, {W_MODP}")
p(f"v_lshlrev_b32 v28, 3, {vL}")
p(f"v_mov_b32 v97, {vTAG}")
p("s_mov_b64 exec, 0xffffffff")
p(f"buffer_store_dwordx2 v[96:97], v28, {sWS}, {sT[0]} offen sc1")
p("s_mov_b64 exec, -1")
p.flush()
p(f"s_branch {LB_J}")
p.re_()
p.label(LB3)
p.rb()
p("v_mov_b32 v26, 0x3f803f80")
for r in range(28, 32):
    p(f"v_mov_b32 v{r}, 0")
for n in range(8):
    p(f"s_waitcnt vmcnt({NCOMMON+1+7-n})")
    for e in range(4):
        x = vXR + 4 * n + e
        p(f"v_dot2c_f32_bf16 v{28+(e&1)}, v{x}, v26")
        p(f"v_dot2c_f32_bf16 v{30+(e&1)}, v{x}, v{x}")
p("v_add_f32 v28, v28, v29")
p("v_add_f32 v30, v30, v31")
for ctl in ("quad_perm:[1,0,3,2]", "quad_perm:[2,3,0,1]", "row_half_mirror"):
    p(f"v_add_f32_dpp v28, v28, v28 {ctl} row_mask:0xf bank_mask:0xf")
    p(f"v_add_f32_dpp v30, v30, v30 {ctl} row_mask:0xf bank_mask:0xf")
p("v_mul_f32 v28, 0x3b000000, v28")
p("v_mul_f32 v30, 0x3b000000, v30")
p("v_fma_f32 v30, -v28, v28, v30")
p("v_max_f32 v30, 0, v30")
p("v_add_f32 v30, 0x3727c5ac, v30")
p("v_rsq_f32 v29, v30")
p(f"v_mov_b32 v30, {vTAG}")
p(f"v_mov_b32 v31, {sXCC}")
p(f"s_lshl_b32 {sT[0]}, {sG}, 12")
p(f"s_lshl_b32 {sT[1]}, {sJ}, 7")
p(f"s_add_u32 {sT[0]}, {sT[0]}, {sT[1]}")
p(f"s_add_u32 {sT[0]}, {sT[0]}, {W_STAT1}")
p(f"v_lshlrev_b32 v27, 1, {vL}")
p("s_mov_b32 exec_lo, 0x01010101")
p("s_mov_b32 exec_hi, 0x01010101")
p(f"buffer_store_dwordx4 v[28:31], v27, {sWS}, {sT[0]} offen sc1")
p("s_mov_b64 exec, -1")
p.flush()
p.re_()
p.label(LB_J)
stamp("pubA")

vRT = 56
p(f"v_and_b32 v12, 1, {vQ}")
p(f"v_lshlrev_b32 v12, 3, v12")
p(f"v_sub_u32 v12, {vD16}, v12")
p(f"v_and_b32 v13, 1, v12")
p(f"v_lshlrev_b32 v13, 4, v13")
p(f"v_lshlrev_b32 v13, v13, 0x3f80") if False else None
p(f"v_mov_b32 v14, 0x3f80")
p(f"v_lshlrev_b32 v13, v13, v14")
p(f"v_ashrrev_i32 v12, 1, v12")
for n in range(4):
    p(f"v_cmp_eq_u32 vcc, {n}, v12")
    p(f"v_cndmask_b32 v{vRT+n}, 0, v13, vcc")
for i_ in range(11):
    p(f"s_mul_i32 {sT[0]}, {sW}, 11")
    p(f"s_add_u32 {sT[0]}, {sT[0]}, {i_}")
    p(f"s_mul_i32 {sT[1]}, {sT[0]}, 43")
    p(f"s_lshr_b32 {sT[1]}, {sT[1]}, 8")
    p(f"s_mul_i32 {sT[1]}, {sT[1]}, 6")
    p(f"s_add_u32 {sKS[i_]}, {sT[0]}, {sT[1]}")
lo, lg, lu = srd_lo(sGU), srd_lo(sWG), srd_lo(sWU)
p(f"s_bitcmp0_b32 {sW}, 0")
p(f"s_cselect_b64 s[{lo}:{lo+1}], s[{lg}:{lg+1}], s[{lu}:{lu+1}]")


def mod_gather(q, addone_lo, addone_hi):
    lp, dn = q.newlabel("MP"), q.newlabel("MD")
    q(f"s_mul_i32 {sT[0]}, {sJ}, {8*768}")
    q(f"s_lshl_b32 {sT[1]}, {sW}, 8")
    q(f"s_add_u32 {sT[0]}, {sT[0]}, {sT[1]}")
    q(f"s_add_u32 {sT[0]}, {sT[0]}, {W_MODP}")
    q(f"v_mul_u32_u24 v12, 768, {vQ}")
    q(f"v_lshl_add_u32 v12, {vD16}, 4, v12")
    q(f"s_mov_b32 {sCNT}, {SPIN}")
    q.flush()
    q.label(lp)
    q(f"buffer_load_dwordx4 v[16:19], v12, {sWS}, {sT[0]} offen sc1")
    q(f"buffer_load_dwordx4 v[24:27], v12, {sWS}, {sT[0]} offen offset:{4*768} sc1")
    q(f"s_sub_u32 {sCNT}, {sCNT}, 1")
    q(f"s_cbranch_scc1 {dn}")
    q("s_waitcnt vmcnt(0)")
    q(f"v_xor_b32 v13, {sTAG}, v17")
    q(f"v_xor_b32 v14, {sTAG}, v19")
    q(f"v_xor_b32 v15, {sTAG}, v25")
    q(f"v_xor_b32 v28, {sTAG}, v27")
    q("v_or_b32 v13, v13, v14")
    q("v_or3_b32 v13, v13, v15, v28")
    q("v_cmp_ne_u32 vcc, 0, v13")
    q(f"s_cbranch_vccnz {lp}")
    q.label(dn)
    q("s_waitcnt vmcnt(0)")
    q("v_add_f32 v16, v16, v24")
    q("v_add_f32 v18, v18, v26")
    q("v_permlane32_swap_b32 v16, v18")
    q("v_add_f32 v12, v16, v18")
    q("v_mov_b32 v13, v12")
    q("v_permlane16_swap_b32 v13, v12")
    q("v_add_f32 v12, v12, v13")
    q("v_cvt_pk_bf16_f32 v12, v12, v12")
    q("v_and_b32 v12, 0xffff0000, v12")


p(f"s_cmp_eq_u32 {sW}, 0")
p("s_cbranch_scc0 A_J3")
p.rb()
mod_gather(p, 0, 1)
p("v_add_f32 v13, 1.0, v12")
p("v_cvt_pk_bf16_f32 v13, v13, v13")
p("v_and_b32 v13, 0xffff0000, v13")
p(f"v_cmp_lt_u32 vcc, 7, {vD16}")
p("v_cndmask_b32 v12, v12, v13, vcc")
p(f"v_lshlrev_b32 v13, 3, {vD16}")
p(f"v_lshl_add_u32 v13, {vHF}, 2, v13")
p(f"ds_write_b32 v13, v12 offset:{L_AS}") if L_AS < 65536 else None
if L_AS >= 65536:
    p(f"v_add_u32 v13, {L_AS}, v13")
    p(f"ds_write_b32 v13, v12")
p.flush()
p.re_()
p.label("A_J3")
lp, dn = "A_SP", "A_SD"
p(f"s_lshl_b32 {sT[0]}, {sG}, 12")
p(f"s_lshl_b32 {sT[1]}, {sW}, 10")
p(f"s_add_u32 {sT[0]}, {sT[0]}, {sT[1]}")
p(f"s_add_u32 {sT[0]}, {sT[0]}, {W_STAT1}")
p(f"v_lshlrev_b32 v12, 4, {vR32}")
p(f"s_mov_b32 {sCNT}, {SPIN}")
p.flush()
p.label(lp)
p(f"buffer_load_dwordx4 v[16:19], v12, {sWS}, {sT[0]} offen sc1")
p(f"buffer_load_dwordx4 v[24:27], v12, {sWS}, {sT[0]} offen offset:512 sc1")
p(f"s_sub_u32 {sCNT}, {sCNT}, 1")
p(f"s_cbranch_scc1 {dn}")
p("s_waitcnt vmcnt(0)")
p(f"v_xor_b32 v13, {sTAG}, v18")
p(f"v_xor_b32 v14, {sTAG}, v26")
p("v_or_b32 v13, v13, v14")
p("v_cmp_ne_u32 vcc, 0, v13")
p(f"s_cbranch_vccnz {lp}")
p.label(dn)
p("s_waitcnt vmcnt(0)")
stamp("gotStat")
for t in range(2):
    for e in range(4):
        unpack(p, v(vXS + 4 * t + e), v(64 + 8 * t + 2 * e), v(65 + 8 * t + 2 * e))
p("v_mul_f32 v16, v16, v17")
p("v_mul_f32 v24, v24, v25")
for t in range(2):
    b = 16 + 8 * t
    for e in range(4):
        r = 64 + 8 * t + 2 * e
        p(f"v_pk_fma_f32 {v(r,2)}, {v(r,2)}, {v(b,2)}, {v(b,2)} op_sel:[0,1,0] op_sel_hi:[1,1,0] neg_lo:[0,0,1] neg_hi:[0,0,1]")
p(f"v_lshlrev_b32 v12, 5, {vHF}")
p(f"v_add_u32 v12, {L_AS}, v12")
p("s_waitcnt lgkmcnt(0)")
p("s_barrier")
p("ds_read_b128 v[80:83], v12")
p("ds_read_b128 v[88:91], v12 offset:64")
p("ds_read_b128 v[84:87], v12 offset:16")
p("ds_read_b128 v[92:95], v12 offset:80")
p(f"s_lshl_b32 {sT[0]}, {sG}, 18")
p(f"s_lshl_b32 {sT[1]}, {sW}, 16")
p(f"s_add_u32 {sT[0]}, {sT[0]}, {sT[1]}")
p(f"s_lshl_b32 {sT[1]}, {sJ}, 10")
p(f"s_add_u32 {sT[0]}, {sT[0]}, {sT[1]}")
p(f"s_add_u32 {sT[0]}, {sT[0]}, {W_H}")
p(f"s_add_u32 {sT[1]}, {sT[0]}, 32768")
p("s_waitcnt lgkmcnt(0)")
stamp("gotMod")
for t in range(2):
    for e in range(4):
        r = 64 + 8 * t + 2 * e
        p(f"v_pk_fma_f32 {v(r,2)}, {v(r,2)}, {v(88+2*e,2)}, {v(80+2*e,2)}")
    for e in range(4):
        r = 64 + 8 * t + 2 * e
        p(f"v_cvt_pk_bf16_f32 v{vXS+4*t+e}, v{r}, v{r+1}")
    th = p(f"buffer_store_dwordx4 {v(vXS+4*t,4)}, {vL16}, {sWS}, {sT[t]} offen{SC}")
tq = wqkv_dma(p, 0, L_WQ)
p(f"s_lshl_b32 {sT[0]}, {sG}, 9")
p(f"s_lshl_b32 {sT[1]}, {sW}, 7")
p(f"s_add_u32 {sT[0]}, {sT[0]}, {sT[1]}")
p(f"s_lshl_b32 {sT[1]}, {sJ}, 2")
p(f"s_add_u32 {sT[0]}, {sT[0]}, {sT[1]}")
p(f"s_add_u32 {sT[0]}, {sT[0]}, {W_FH}")
publish_flag(p, sT[0], th)
stamp("pubH")
p(f"s_sub_u32 {sT[7]}, {sW}, 1")
p(f"s_cmp_lt_u32 {sT[7]}, 2")
p("s_cbranch_scc0 A_J4")
p.rb()
mod_gather(p, 0, 0)
p("v_add_f32 v13, 1.0, v12")
p("v_cvt_pk_bf16_f32 v13, v13, v13")
p(f"s_lshl_b32 {sT[0]}, {sT[7]}, 3")
p(f"v_cmp_gt_u32 vcc, {sT[0]}, {vD16}")
p("v_cndmask_b32 v12, v12, v13, vcc")
p(f"s_lshl_b32 {sT[0]}, {sG}, 12")
p(f"s_lshl_b32 {sT[1]}, {sT[7]}, 11")
p(f"s_add_u32 {sT[0]}, {sT[0]}, {sT[1]}")
p(f"s_lshl_b32 {sT[1]}, {sJ}, 5")
p(f"s_add_u32 {sT[0]}, {sT[0]}, {sT[1]}")
p(f"s_add_u32 {sT[0]}, {sT[0]}, {W_MODF}")
p("v_mov_b32 v13, v12")
p("v_permlane32_swap_b32 v13, v12")
p("v_lshrrev_b32 v13, 16, v13")
p("v_and_or_b32 v12, v12, v14, v13") if False else None
p("v_and_b32 v12, 0xffff0000, v12")
p("v_or_b32 v12, v12, v13")
p(f"v_lshrrev_b32 v13, 3, {vD16}")
p(f"v_and_b32 v14, 7, {vD16}")
p("v_lshlrev_b32 v13, 10, v13")
p("v_lshl_add_u32 v13, v14, 2, v13")
p("s_mov_b64 exec, 0xffff")
p(f"buffer_store_dword v12, v13, {sWS}, {sT[0]} offen{SC}")
p("s_mov_b64 exec, -1")
p.flush()
p.re_()
p.label("A_J4")

vH = 128
aK, aV, aQ, aP = 64, 80, 96, 112
vWF = 32
p(f"s_lshl_b32 {sT[0]}, {sRB}, 2")
p(f"s_add_u32 {sT[3]}, {sT[0]}, {sW}")
p(f"s_lshr_b32 {sT[0]}, {sT[3]}, 1")
p(f"s_lshl_b32 {sT[0]}, {sT[0]}, 7")
p(f"s_lshl_b32 {sT[1]}, {sG}, 9")
p(f"s_add_u32 {sT[0]}, {sT[0]}, {sT[1]}")
p(f"s_add_u32 {sT[0]}, {sT[0]}, {W_FH}")
p(f"v_lshlrev_b32 v12, 2, {vR32}")
poll(p, "v12", sT[0], "v13")
stamp("gotH")
p(f"s_lshl_b32 {sT[0]}, {sG}, 3")
p(f"s_add_u32 {sT[3]}, {sT[3]}, {sT[0]}")
p(f"s_lshl_b32 {sT[4]}, {sT[3]}, 15")
p(f"s_add_u32 {sT[0]}, {sT[4]}, {W_H}")
hl = []
for ks in range(32):
    hl.append(p(f"buffer_load_dwordx4 {v(vH+4*ks,4)}, {vL16}, {sWS}, {sT[0]} offen offset:{1024*(ks&3)} sc1"))
    if ks & 3 == 3 and ks < 31:
        p(f"s_add_u32 {sT[0]}, {sT[0]}, 4096")
p("s_barrier")
vPH = 20
p(f"v_bfe_u32 v12, {vL}, 2, 2")
p(f"v_lshl_add_u32 v12, {vHF}, 2, v12")
p(f"v_lshlrev_b32 v12, 5, v12")
p(f"v_bfe_u32 v13, {vL}, 1, 1")
p(f"v_and_b32 v14, 1, {vQ}")
p(f"v_lshl_add_u32 v13, v14, 1, v13")
p(f"v_lshl_add_u32 v12, v13, 3, v12")
p(f"v_add_u32 v12, {L_WPHI}, v12")
for hh in range(2):
    p(f"ds_read_b64_tr_b16 {v(vPH+4*hh,2)}, v12 offset:{512*hh}")
    tph = p(f"ds_read_b64_tr_b16 {v(vPH+4*hh+2,2)}, v12 offset:{512*hh+256}")
p(f"v_bfe_i32 v13, {vL}, 2, 1")
p(f"v_and_b32 v13, 0x80008000, v13")
p(f"v_add_u32 v14, {L_WQ}, {vTRN}")
p.wl(tph)
for r in range(8):
    p(f"v_xor_b32 v{vPH+r}, v13, v{vPH+r}")


def wread(q, slot, addr, off):
    r = vWF + 4 * slot
    q(f"ds_read_b64_tr_b16 {v(r,2)}, {addr} offset:{off}")
    return q(f"ds_read_b64_tr_b16 {v(r+2,2)}, {addr} offset:{off+256}")


NS = 6
seq = [(ks, t) for ks in range(32) for t in range(2)]
rd = {}
PRE = 4
for n in range(PRE):
    ks, t = seq[n]
    rd[n] = wread(p, n % NS, vTRV if t else vTRN, (L_WV if t else L_WK) + 1024 * ks)
for n, (ks, t) in enumerate(seq):
    if n + PRE < len(seq):
        k2, t2 = seq[n + PRE]
        rd[n + PRE] = wread(p, (n + PRE) % NS, vTRV if t2 else vTRN, (L_WV if t2 else L_WK) + 1024 * k2)
    if t == 0:
        p.wv(hl[ks])
    p.wl(rd[n])
    acc = aV if t else aK
    p(f"v_mfma_f32_32x32x16_bf16 {v(acc,16)}, {v(vWF+4*(n%NS),4)}, {v(vH+4*ks,4)}, {'0' if ks==0 else v(acc,16)}")
stamp("kvGemm")


def softmax(q, P, out):
    q(f"v_max3_f32 v12, v{P}, v{P+1}, v{P+2}")
    q(f"v_max3_f32 v13, v{P+3}, v{P+4}, v{P+5}")
    q(f"v_max3_f32 v12, v12, v{P+6}, v{P+7}")
    q(f"v_max3_f32 v13, v13, v{P+8}, v{P+9}")
    q(f"v_max3_f32 v12, v12, v{P+10}, v{P+11}")
    q(f"v_max3_f32 v13, v13, v{P+12}, v{P+13}")
    q(f"v_max3_f32 v12, v12, v{P+14}, v{P+15}")
    q(f"v_max_f32 v12, v12, v13")
    for n in range(8):
        r = P + 2 * n
        q(f"v_pk_add_f32 {v(r,2)}, {v(r,2)}, v[12:13] op_sel_hi:[1,0] neg_lo:[0,1] neg_hi:[0,1]")
    for n in range(8):
        r = P + 2 * n
        q(f"v_pk_mul_f32 {v(r,2)}, {v(r,2)}, s[64:65] op_sel:[0,1]")
    for n in range(16):
        q(f"v_exp_f32 v{P+n}, v{P+n}")
    q(f"v_pk_add_f32 v[12:13], {v(P,2)}, {v(P+2,2)}")
    q(f"v_pk_add_f32 v[16:17], {v(P+4,2)}, {v(P+6,2)}")
    q(f"v_pk_add_f32 v[12:13], v[12:13], {v(P+8,2)}")
    q(f"v_pk_add_f32 v[16:17], v[16:17], {v(P+10,2)}")
    q(f"v_pk_add_f32 v[12:13], v[12:13], {v(P+12,2)}")
    q(f"v_pk_add_f32 v[16:17], v[16:17], {v(P+14,2)}")
    q(f"v_pk_add_f32 v[12:13], v[12:13], v[16:17]")
    q(f"v_add_f32 v12, v12, v13")
    q(f"v_rcp_f32 v12, v12")
    for n in range(8):
        r = P + 2 * n
        q(f"v_pk_mul_f32 {v(r,2)}, {v(r,2)}, v[12:13] op_sel_hi:[1,0]")
    for n in range(8):
        q(f"v_cvt_pk_bf16_f32 v{out+n}, v{P+2*n}, v{P+2*n+1}")


def pack(q, src, dst, n):
    for e in range(n):
        q(f"v_cvt_pk_bf16_f32 v{dst+e}, v{src+2*e}, v{src+2*e+1}")


p(f"s_lshl_b32 {sT[0]}, {sW}, 10")
p(f"s_add_u32 {sT[0]}, {sT[0]}, {L_PL}")
p(f"v_lshl_add_u32 v15, {vR32}, 5, {sT[0]}")
p(f"v_lshl_add_u32 v15, {vHF}, 12, v15")
pack(p, aK, 32, 8)
p(f"v_mfma_f32_32x32x16_bf16 {v(aP,16)}, {v(vPH,4)}, v[32:35], 0")
p(f"v_mfma_f32_32x32x16_bf16 {v(aQ,16)}, {v(vPH+4,4)}, v[36:39], 0")
pack(p, aV, 40, 8)
p(f"ds_write_b128 v15, v[40:43] offset:16384")
p(f"ds_write_b128 v15, v[44:47] offset:16400")
softmax(p, aP, 32)
p(f"ds_write_b128 v15, v[32:35]")
p(f"ds_write_b128 v15, v[36:39] offset:16")
softmax(p, aQ, 48)
p(f"ds_write_b128 v15, v[48:51] offset:8192")
p(f"ds_write_b128 v15, v[52:55] offset:8208")
p(f"s_lshl_b32 {sT[0]}, {sW}, 12")
p(f"s_add_u32 {sT[0]}, {sT[0]}, {L_PL}")
p(f"v_lshl_add_u32 v12, {vL}, 3, {sT[0]}")
p(f"s_lshr_b32 {sT[0]}, {sW}, 1")
p(f"s_lshl_b32 {sT[0]}, {sT[0]}, 12")
p(f"s_add_u32 {sT[0]}, {sT[0]}, {L_PL+16384}")
p(f"v_lshl_add_u32 v13, {vL}, 3, {sT[0]}")
for r in range(4):
    p(f"v_mov_b32 v{16+r}, 0x3f803f80")
p("s_waitcnt lgkmcnt(0)")
p("s_barrier")
stamp("phiK")
tr = []
for s_ in range(4):
    p(f"ds_read_b64_tr_b16 {v(64+8*s_,2)}, v12 offset:{1024*s_}")
    p(f"ds_read_b64_tr_b16 {v(66+8*s_,2)}, v12 offset:{1024*s_+512}")
    p(f"ds_read_b64_tr_b16 {v(68+8*s_,2)}, v13 offset:{1024*s_}")
    tr.append(p(f"ds_read_b64_tr_b16 {v(70+8*s_,2)}, v13 offset:{1024*s_+512}"))
for s_ in range(4):
    p.wl(tr[s_])
    p(f"v_mfma_f32_16x16x32_bf16 v[112:115], {v(64+8*s_,4)}, {v(68+8*s_,4)}, {'0' if s_==0 else 'v[112:115]'}")
    p(f"v_mfma_f32_16x16x32_bf16 v[116:119], {v(64+8*s_,4)}, v[16:19], {'0' if s_==0 else 'v[116:119]'}")
p(f"s_lshl_b32 {sT[5]}, {sHP}, 2")
p(f"s_add_u32 {sT[5]}, {sT[5]}, {sW}")
p(f"s_lshl_b32 {sT[5]}, {sT[5]}, 4")
p(f"s_lshl_b32 {sT[6]}, {sG}, 1")
p(f"s_add_u32 {sT[6]}, {sT[6]}, {sRB}")
p(f"s_add_u32 {sT[2]}, {sT[5]}, {sT[6]}")
p(f"s_lshl_b32 {sT[0]}, {sT[2]}, 9")
p(f"s_add_u32 {sT[0]}, {sT[0]}, {W_KV}")
p(f"s_lshl_b32 {sT[1]}, {sT[2]}, 5")
p(f"s_add_u32 {sT[1]}, {sT[1]}, {W_Z}")
p(f"v_lshlrev_b32 v12, 3, {vQ}")
p(f"v_lshl_add_u32 v12, {vD16}, 5, v12")
pack(p, 112, 112, 2)
pack(p, 116, 116, 2)
p(f"buffer_store_dwordx2 v[112:113], v12, {sWS}, {sT[0]} offen sc1")
p("s_mov_b32 exec_lo, 0x00010001")
p("s_mov_b32 exec_hi, 0x00010001")
tkv = p(f"buffer_store_dwordx2 v[116:117], v12, {sWS}, {sT[1]} offen sc1")
p("s_mov_b64 exec, -1")
p(f"s_lshl_b32 {sT[0]}, {sHP}, 8")
p(f"s_lshl_b32 {sT[1]}, {sT[6]}, 4")
p(f"s_add_u32 {sT[0]}, {sT[0]}, {sT[1]}")
p(f"s_lshl_b32 {sT[1]}, {sW}, 2")
p(f"s_add_u32 {sT[0]}, {sT[0]}, {sT[1]}")
p(f"s_add_u32 {sT[7]}, {sT[0]}, {W_FKV}")
rd = {}
for n in range(PRE):
    rd[n] = wread(p, n % NS, "v14", 1024 * n)
for ks in range(32):
    if ks + PRE < 32:
        rd[ks + PRE] = wread(p, (ks + PRE) % NS, "v14", 1024 * (ks + PRE))
    p.wl(rd[ks])
    p(f"v_mfma_f32_32x32x16_bf16 {v(aQ,16)}, {v(vWF+4*(ks%NS),4)}, {v(vH+4*ks,4)}, {'0' if ks==0 else v(aQ,16)}")
    if ks == 23:
        p.wv(tkv)
        p("s_mov_b64 exec, 1")
        p(f"buffer_store_dword {vTAG}, off, {sWS}, {sT[7]} sc1")
        p("s_mov_b64 exec, -1")
        stamp("pubKV")
pack(p, aQ, 32, 8)
p(f"v_mfma_f32_32x32x16_bf16 {v(aP,16)}, {v(vPH,4)}, v[32:35], 0")
p(f"v_mfma_f32_32x32x16_bf16 {v(aK,16)}, {v(vPH+4,4)}, v[36:39], 0")
vFQ = 40
softmax(p, aP, vFQ)
softmax(p, aK, vFQ + 8)
stamp("phiQ")

vDS = 28
vDG, vDX = "v60", "v61"
for n in range(3):
    p(f"v_add_u32 v12, {64*n}, {vL}")
    p(f"v_mul_u32_u24 v13, 5462, v12")
    p(f"v_lshrrev_b32 v13, 16, v13")
    p(f"v_mul_u32_u24 v16, 12, v13")
    p(f"v_sub_u32 v12, v12, v16")
    p(f"v_lshrrev_b32 v16, 3, v13")
    p(f"v_lshlrev_b32 v16, 1, v16")
    p(f"v_xor_b32 v12, v12, v16")
    p(f"v_mul_u32_u24 v13, 2752, v13")
    p(f"v_lshl_add_u32 v{vDS+n}, v12, 4, v13")
p(f"v_and_b32 v12, 1, {vQ}")
p(f"v_bfe_u32 v13, {vL}, 2, 2")
p(f"v_lshl_add_u32 v13, v12, 3, v13")
p(f"v_mul_u32_u24 v13, 192, v13")
p(f"v_mul_u32_u24 v16, {2*DPART}, {vHF}")
p(f"v_add_u32 v13, v13, v16")
p(f"v_lshlrev_b32 v12, 5, v12")
p(f"s_lshr_b32 {sT[0]}, {sW}, 1")
p(f"s_mul_i32 {sT[0]}, {sT[0]}, 96")
p(f"s_and_b32 {sT[1]}, {sW}, 1")
p(f"s_lshl_b32 {sT[2]}, {sT[1]}, 6")
p(f"s_add_u32 {sT[2]}, {sT[2]}, {sT[0]}")
p(f"s_lshl_b32 {sT[1]}, {sT[1]}, 4")
p(f"s_add_u32 {sT[1]}, {sT[1]}, {sT[0]}")
p(f"s_add_u32 {sT[1]}, {sT[1]}, 32")
p(f"v_and_b32 v16, 1, {vL}")
p(f"v_bfe_u32 v17, {vL}, 1, 1")
p(f"v_lshl_add_u32 v18, v16, 1, v17")
p(f"v_lshl_add_u32 v18, v18, 3, {sT[2]}")
p(f"v_xor_b32 v18, v18, v12")
p(f"v_add_u32 {vDG}, v18, v13")
p(f"v_lshl_add_u32 v18, v16, 3, {sT[1]}")
p(f"v_xor_b32 v18, v18, v12")
p(f"v_mul_u32_u24 v17, {DPART}, v17")
p(f"v_add3_u32 {vDX}, v18, v13, v17")


def dstage_issue(q, chunks, lbase):
    q(f"s_lshr_b32 {sT[0]}, {sW}, 1")
    q(f"s_mul_i32 {sT[0]}, {sT[0]}, {16*2752}")
    q(f"s_mul_i32 {sT[1]}, {sHP}, 192")
    q(f"s_add_u32 {sT[0]}, {sT[0]}, {sT[1]}")
    q(f"s_add_u32 {sT[0]}, {sT[0]}, {chunks[0]*32*2752}")
    q(f"s_mul_i32 {sT[2]}, {sW}, {DPART}")
    q(f"s_add_u32 {sT[2]}, {sT[2]}, {lbase}")
    for ci, c in enumerate(chunks):
        for n in range(3):
            t = dma(q, v(vDS + n), sGU, sT[0], sT[2])
            q(f"s_add_u32 {sT[2]}, {sT[2]}, {1024 if n < 2 else DCH-2048}")
        q(f"s_add_u32 {sT[0]}, {sT[0]}, {32*2752}")
    return t


def dstage_read(q, chunks, lbase):
    for ci, c in enumerate(chunks):
        o = lbase + ci * DCH
        assert o + DPART + 768 < 65536
        for T, (ad, oo) in enumerate(((vDG, 0), (vDG, DPART), (vDX, 0))):
            r = 12 * c + 4 * T
            q(f"ds_read_b64_tr_b16 {a(r,2)}, {ad} offset:{o+oo}")
            q(f"ds_read_b64_tr_b16 {a(r+2,2)}, {ad} offset:{o+oo+768}")


for batch in ([0, 1, 2, 3], [4, 5, 6, 7], [8, 9, 10, 11], [12, 13, 14, 15]):
    p("s_waitcnt lgkmcnt(0)")
    p("s_barrier")
    dstage_issue(p, batch, 0)
    p("s_waitcnt vmcnt(0)")
    p("s_barrier")
    dstage_read(p, batch, 0)
p("s_waitcnt lgkmcnt(0)")
p("s_barrier")
stamp("dstage")
vA8 = "v62"
p(f"v_bfe_u32 v12, {vL}, 2, 3")
p(f"v_lshlrev_b32 v12, 10, v12")
p(f"v_lshl_add_u32 v12, {vHF}, 6, v12")
p(f"v_and_b32 v13, 3, {vL}")
p(f"v_lshl_add_u32 {vA8}, v13, 4, v12")
p(f"s_lshl_b32 {sT[0]}, {sW}, 17")
p(f"s_lshl_b32 {sT[1]}, {sCC}, 7")
p(f"s_add_u32 {sT[0]}, {sT[0]}, {sT[1]}")
p(f"s_lshl_b32 {sT[2]}, {sW}, 14")
p(f"s_add_u32 {sT[2]}, {sT[2]}, {L_WO}")
for n in range(16):
    dma(p, vA8, sWO, sT[0], sT[2])
    if n < 15:
        p(f"s_add_u32 {sT[0]}, {sT[0]}, 8192")
        p(f"s_add_u32 {sT[2]}, {sT[2]}, 1024")
vXT, vXO = 20, "v63"
sXO = "s3"
p(f"v_lshlrev_b32 v12, 10, {vR32}")
p(f"v_lshl_add_u32 {vXO}, {vHF}, 5, v12")
p(f"s_lshl_b32 {sT[0]}, {sG}, 18")
p(f"s_lshl_b32 {sT[1]}, {sCR}, 16")
p(f"s_add_u32 {sT[0]}, {sT[0]}, {sT[1]}")
p(f"s_lshr_b32 {sT[1]}, {sW}, 1")
p(f"s_lshl_b32 {sT[1]}, {sT[1]}, 15")
p(f"s_add_u32 {sT[0]}, {sT[0]}, {sT[1]}")
p(f"s_lshl_b32 {sT[1]}, {sCC}, 7")
p(f"s_add_u32 {sT[0]}, {sT[0]}, {sT[1]}")
p(f"s_and_b32 {sT[1]}, {sW}, 1")
p(f"s_lshl_b32 {sT[1]}, {sT[1]}, 6")
p(f"s_add_u32 {sXO}, {sT[0]}, {sT[1]}")
p(f"buffer_load_dwordx4 {v(vXT,4)}, {vXO}, {sX}, {sXO} offen")
p(f"buffer_load_dwordx4 {v(vXT+4,4)}, {vXO}, {sX}, {sXO} offen offset:16")

p(f"s_lshl_b32 {sT[0]}, {sHP}, 8")
p(f"s_add_u32 {sT[0]}, {sT[0]}, {W_FKV}")
poll(p, vL4, sT[0], "v13")
stamp("gotKV")
p(f"s_lshl_b32 {sT[0]}, {sT[5]}, 9")
p(f"s_add_u32 {sT[0]}, {sT[0]}, {W_KV}")
p(f"s_add_u32 {sT[1]}, {sT[0]}, 4096")
p(f"s_lshl_b32 {sT[2]}, {sT[5]}, 5")
p(f"s_add_u32 {sT[2]}, {sT[2]}, {W_Z}")
p(f"v_and_b32 v12, 1, {vQ}")
p(f"v_lshlrev_b32 v12, 4, v12")
p(f"v_lshl_add_u32 v13, {vHF}, 9, v12")
p(f"v_lshl_add_u32 v13, {vD16}, 5, v13")
p(f"v_lshl_add_u32 v12, {vHF}, 5, v12")
p(f"v_and_b32 v16, 7, {vL}")
p(f"v_lshl_add_u32 v12, v16, 6, v12")
tz = p(f"buffer_load_dwordx4 v[96:99], v12, {sWS}, {sT[2]} offen sc1")
kl = []
for P in range(8):
    kl.append(p(f"buffer_load_dwordx4 {v(64+4*P,4)}, v13, {sWS}, {sT[P>>2]} offen offset:{1024*(P&3)} sc1"))
p(f"s_mul_i32 {sT[0]}, {sW}, 576")
p(f"s_add_u32 {sT[0]}, {sT[0]}, {L_KVS}")
p(f"v_lshl_add_u32 v16, {vQ}, 3, {sT[0]}")
p(f"v_lshl_add_u32 v17, {vD16}, 5, v16")
p(f"v_bfe_u32 v12, {vL}, 2, 1")
p(f"v_bfe_u32 v13, {vL}, 3, 1")
p(f"v_and_b32 v18, 3, {vL}")
p(f"v_lshl_add_u32 v18, v12, 3, v18")
p(f"v_lshl_add_u32 v18, v13, 2, v18")
p(f"v_cmp_lt_u32 vcc, 15, {vR32}")
p(f"v_cndmask_b32 v18, v18, 16, vcc")
p(f"v_lshlrev_b32 v18, 5, v18")
p(f"v_mul_u32_u24 v12, 576, {vHF}")
p(f"v_add_u32 v12, {L_KVS}, v12")
p(f"v_add_u32 v18, v18, v12")
p.wv(tz)
p(f"v_mfma_f32_16x16x32_bf16 v[116:119], {v(vRT,4)}, v[96:99], 0")
for P in range(8):
    p.wv(kl[P])
    p(f"v_mfma_f32_16x16x32_bf16 v[112:115], {v(vRT,4)}, {v(64+4*P,4)}, {'0' if P==0 else 'v[112:115]'}")
    if P == 3:
        for sh in (1, 2, 4):
            for r in range(4):
                p(f"v_add_f32_dpp v{116+r}, v{116+r}, v{116+r} row_ror:{sh} row_mask:0xf bank_mask:0xf")
pack(p, 116, 116, 2)
p("ds_write_b64 v16, v[116:117] offset:512")
pack(p, 112, 112, 2)
p("ds_write_b64 v17, v[112:113]")
p("s_waitcnt lgkmcnt(0)")
p("s_barrier")
tr = []
for hh in range(2):
    for s_ in range(2):
        tr.append(p(f"ds_read_b128 {v(64+8*hh+4*s_,4)}, v18 offset:{1152*hh+16*s_}"))
for hh in range(2):
    for s_ in range(2):
        p.wl(tr[2 * hh + s_])
        acc = 96 + 16 * hh
        p(f"v_mfma_f32_32x32x16_bf16 {v(acc,16)}, {v(64+8*hh+4*s_,4)}, {v(vFQ+8*hh+4*s_,4)}, {'0' if s_==0 else v(acc,16)}")
p(f"s_lshl_b32 {sT[0]}, {sHP}, 11")
p(f"s_add_u32 {sT[0]}, {sT[0]}, {sT[4]}")
p(f"s_add_u32 {sT[0]}, {sT[0]}, {W_O}")
for hh in range(2):
    acc = 96 + 16 * hh
    p(f"v_add_f32 v{acc+8}, 0x358637bd, v{acc+8}")
    p(f"v_rcp_f32 v{acc+8}, v{acc+8}")
    for e in range(4):
        p(f"v_pk_mul_f32 {v(acc+2*e,2)}, {v(acc+2*e,2)}, {v(acc+8,2)} op_sel_hi:[1,0]")
    pack(p, acc, acc + 12, 4)
    to = p(f"buffer_store_dwordx4 {v(acc+12,4)}, {vL16}, {sWS}, {sT[0]} offen offset:{1024*hh}{SC}")
p(f"s_lshl_b32 {sT[0]}, {sT[3]}, 6")
p(f"s_lshl_b32 {sT[1]}, {sHP}, 2")
p(f"s_add_u32 {sT[0]}, {sT[0]}, {sT[1]}")
p(f"s_add_u32 {sT[0]}, {sT[0]}, {W_FO}")
publish_flag(p, sT[0], to)
stamp("pubO")

p(f"s_lshl_b32 {sT[3]}, {sG}, 2")
p(f"s_add_u32 {sT[3]}, {sT[3]}, {sCR}")
p(f"s_lshl_b32 {sT[0]}, {sT[3]}, 7")
p(f"s_add_u32 {sT[0]}, {sT[0]}, {W_FO}")
p(f"v_lshlrev_b32 v12, 2, {vR32}")
poll(p, "v12", sT[0], "v13")
stamp("gotO")
p(f"s_lshl_b32 {sT[0]}, {sG}, 12")
p(f"s_lshl_b32 {sT[1]}, {sW}, 10")
p(f"s_add_u32 {sT[0]}, {sT[0]}, {sT[1]}")
p(f"s_add_u32 {sT[0]}, {sT[0]}, {W_MODF}")
p(f"s_add_u32 {sT[1]}, {sT[1]}, {L_MODL}")
dma(p, vL16, sWS, sT[0], sT[1], " sc1")
p(f"s_lshr_b32 {sT[1]}, {sW}, 1")
p(f"s_lshl_b32 {sT[1]}, {sT[1]}, 15")
p(f"s_and_b32 {sT[2]}, {sW}, 1")
p(f"s_lshl_b32 {sT[2]}, {sT[2]}, 12")
p(f"s_add_u32 {sT[2]}, {sT[2]}, {sT[1]}")
p(f"s_lshl_b32 {sT[0]}, {sT[3]}, 16")
p(f"s_add_u32 {sT[0]}, {sT[0]}, {sT[2]}")
p(f"s_add_u32 {sT[0]}, {sT[0]}, {W_O}")
p(f"s_add_u32 {sT[2]}, {sT[2]}, {L_O}")
ol = []
for c in range(4):
    p(f"s_mov_b32 m0, {sT[2]}")
    for n in range(4):
        t = p(f"buffer_load_dwordx4 {vL16}, {sWS}, {sT[0]} offen offset:{1024*n} sc1 lds")
    ol.append(t)
    if c < 3:
        p(f"s_add_u32 {sT[0]}, {sT[0]}, 8192")
        p(f"s_add_u32 {sT[2]}, {sT[2]}, 8192")
p(f"s_cmp_eq_u32 s2, 0")
p("s_cbranch_scc0 C_NOEP")
p.rb()
p("s_mov_b64 exec, 1")
p(f"buffer_store_dword {vTAG}, off, {sWS}, 0 sc1")
p("s_mov_b64 exec, -1")
p.re_()
p.label("C_NOEP")
vTC = "v31"
p(f"s_and_b32 {sT[2]}, {sW}, 1")
p(f"s_lshl_b32 {sT[2]}, {sT[2]}, 9")
p(f"v_lshl_add_u32 {vTC}, {vHF}, 9, {vTRV}")
p(f"v_add_u32 {vTC}, {sT[2]}, {vTC}")
p(f"s_add_u32 {sT[1]}, {sT[1]}, {L_O}")
p(f"v_add_u32 v14, {sT[1]}, {vL16}")
vX1 = 64
vOF = 96
for c in range(4):
    p.wv(ol[c])
    p("s_barrier")
    rd = {}

    def cread(n):
        ks = 8 * c + n
        wread(p, ks % NS, vTC, L_WO + 2048 * ks)
        return p(f"ds_read_b128 {v(vOF+4*(ks%NS),4)}, v14 offset:{1024*ks}")
    for n in range(4):
        rd[n] = cread(n)
    for n in range(8):
        ks = 8 * c + n
        if n + 4 < 8:
            rd[n + 4] = cread(n + 4)
        p.wl(rd[n])
        p(f"v_mfma_f32_32x32x16_bf16 {v(vX1,16)}, {v(vWF+4*(ks%NS),4)}, {v(vOF+4*(ks%NS),4)}, {'0' if ks==0 else v(vX1,16)}")
stamp("cGemm")
vMV = "v59"
p(f"s_lshl_b32 {sT[0]}, {sCC}, 1")
p(f"s_and_b32 {sT[1]}, {sW}, 1")
p(f"s_add_u32 {sT[4]}, {sT[0]}, {sT[1]}")
p(f"s_lshl_b32 {sT[0]}, {sT[4]}, 6")
p(f"s_add_u32 {sT[0]}, {sT[0]}, {L_MODL}")
p(f"v_lshl_add_u32 {vMV}, {vHF}, 5, {sT[0]}")
p(f"ds_read_b128 v[32:35], {vMV}")
tg = p(f"ds_read_b128 v[36:39], {vMV} offset:16")
p(f"ds_read_b128 v[40:43], {vMV} offset:2048")
ta = p(f"ds_read_b128 v[44:47], {vMV} offset:2064")
for e in range(8):
    unpack(p, v(vXT + e), v(80 + 2 * e), v(81 + 2 * e))
p.wl(tg)
for e in range(8):
    unpack(p, v(32 + e), v(96 + 2 * e), v(97 + 2 * e))
p.wl(ta)
for e in range(8):
    unpack(p, v(40 + e), v(112 + 2 * e), v(113 + 2 * e))
for e in range(8):
    r = vX1 + 2 * e
    p(f"v_pk_fma_f32 {v(r,2)}, {v(r,2)}, {v(96+2*e,2)}, {v(80+2*e,2)}")
for e in range(8):
    p(f"v_pk_mul_f32 {v(112+2*e,2)}, {v(vX1+2*e,2)}, {v(112+2*e,2)}")
pack(p, 112, 32, 8)
p(f"s_lshr_b32 {sT[1]}, {sW}, 1")
p(f"s_lshl_b32 {sT[5]}, {sT[3]}, 1")
p(f"s_add_u32 {sT[5]}, {sT[5]}, {sT[1]}")
p(f"s_lshl_b32 {sT[0]}, {sT[5]}, 15")
p(f"s_lshl_b32 {sT[1]}, {sT[4]}, 10")
p(f"s_add_u32 {sT[0]}, {sT[0]}, {sT[1]}")
p(f"s_add_u32 {sT[0]}, {sT[0]}, {W_Y}")
p(f"v_and_b32 v12, 1, {vQ}")
p(f"v_lshlrev_b32 v12, 14, v12")
p(f"v_lshl_add_u32 v12, {vHF}, 9, v12")
p(f"v_lshl_add_u32 v12, {vD16}, 4, v12")
p(f"buffer_store_dwordx4 v[32:35], v12, {sWS}, {sT[0]} offen{SC}")
p(f"buffer_store_dwordx4 v[36:39], v12, {sWS}, {sT[0]} offen offset:256{SC}")
p(f"v_pk_add_f32 v[16:17], {v(vX1,2)}, {v(vX1+2,2)}")
p(f"v_pk_mul_f32 v[18:19], {v(vX1,2)}, {v(vX1,2)}")
for e in range(1, 8):
    r = vX1 + 2 * e
    if e > 1:
        p(f"v_pk_add_f32 v[16:17], v[16:17], {v(r,2)}")
    p(f"v_pk_fma_f32 v[18:19], {v(r,2)}, {v(r,2)}, v[18:19]")
p("v_add_f32 v16, v16, v17")
p("v_add_f32 v18, v18, v19")
p("v_permlane32_swap_b32 v16, v18")
p("v_add_f32 v16, v16, v18")
p(f"s_lshl_b32 {sT[0]}, {sT[5]}, 4")
p(f"s_add_u32 {sT[0]}, {sT[0]}, {sT[4]}")
p(f"s_lshl_b32 {sT[1]}, {sT[0]}, 8")
p(f"s_add_u32 {sT[1]}, {sT[1]}, {W_ST2}")
ty = p(f"buffer_store_dword v16, {vL4}, {sWS}, {sT[1]} offen{SC}")
p(f"s_lshl_b32 {sT[0]}, {sT[0]}, 2")
p(f"s_add_u32 {sT[0]}, {sT[0]}, {W_FY}")
publish_flag(p, sT[0], ty)
stamp("pubY")

vAE = 44
p(f"v_and_b32 v12, 1, {vL}")
p(f"v_lshlrev_b32 v12, 10, v12")
p(f"v_sub_u32 v12, {L_MODL+2048}, v12")
p(f"v_lshl_add_u32 v12, {vQ}, 4, v12")
rd = {}
for n in range(4):
    rd[n] = p(f"ds_read_b128 {v(vOF+4*(n%NS),4)}, v12 offset:{64*n}")
for ks in range(16):
    if ks + 4 < 16:
        rd[ks + 4] = p(f"ds_read_b128 {v(vOF+4*((ks+4)%NS),4)}, v12 offset:{64*(ks+4)}")
    p.wl(rd[ks])
    for T in range(3):
        acc = 80 + 4 * T
        p(f"v_mfma_f32_16x16x32_bf16 {v(acc,4)}, {v(vOF+4*(ks%NS),4)}, {a(12*ks+4*T,4)}, {'0' if ks==0 else v(acc,4)}")
p(f"v_cmp_gt_u32 vcc, 16, {vL}")
for T in range(3):
    u, t_ = 80 + 4 * T, 81 + 4 * T
    o = vAE + 4 * T
    p(f"v_cndmask_b32 v{u}, 0, v{u}, vcc")
    p(f"v_cndmask_b32 v{t_}, 0, v{t_}, vcc")
    p(f"v_cvt_pk_bf16_f32 v{o+1}, v{u}, v{t_}")
    unpack(p, v(o + 1), "v12", "v13")
    p(f"v_sub_f32 v{u}, v{u}, v12")
    p(f"v_sub_f32 v{t_}, v{t_}, v13")
    p(f"v_cvt_pk_bf16_f32 v{o}, v12, v{u}")
    p(f"v_cvt_pk_bf16_f32 v{o+2}, v{t_}, v13")
    p(f"v_mov_b32 v{o+3}, 0")
stamp("ut")

sPAR = "s3x"
def wd_reg(slot, ct):
    n = 8 * slot + 4 * ct
    return ("a", 192 + n) if n < 64 else ("v", 144 + n - 64)
def rg(rc, c, off=0):
    return (a if rc[0] == "a" else v)(rc[1] + off, c)


p("s_barrier")
vTE, vTE2 = "v57", "v58"
p(f"s_lshl_b32 {sT[6]}, {sW}, 15")
p(f"v_add_u32 {vTE}, {sT[6]}, {vTC}")
p(f"v_xor_b32 {vTE2}, 512, {vTE}")
p(f"s_and_b32 {sT[7]}, {sCR}, 1")
p(f"s_mul_i32 {sT[7]}, {sT[7]}, 6")
for half in range(2):
    p(f"s_mov_b32 {sT[2]}, {sT[6]}")
    for i_ in range(11):
        p(f"s_add_u32 {sT[0]}, {sKS[i_]}, {sT[7]}")
        p(f"s_lshl_b32 {sT[0]}, {sT[0]}, 14")
        p(f"s_lshl_b32 {sT[1]}, {sCC}, 7")
        p(f"s_add_u32 {sT[0]}, {sT[0]}, {sT[1]}")
        dma(p, vA8, sWD, sT[0], sT[2])
        p(f"s_add_u32 {sT[0]}, {sT[0]}, 8192")
        p(f"s_add_u32 {sT[2]}, {sT[2]}, 1024")
        dma(p, vA8, sWD, sT[0], sT[2])
        p(f"s_add_u32 {sT[2]}, {sT[2]}, 1024")
    p("s_waitcnt vmcnt(0)")
    for i_ in range(11):
        for ct in range(2):
            rc = wd_reg(11 * half + i_, ct)
            ad = vTE2 if ct else vTE
            p(f"ds_read_b64_tr_b16 {rg(rc,2)}, {ad} offset:{2048*i_}")
            p(f"ds_read_b64_tr_b16 {rg(rc,2,2)}, {ad} offset:{2048*i_+256}")
    p("s_waitcnt lgkmcnt(0)")
    p(f"s_sub_u32 {sT[7]}, 6, {sT[7]}")
p("s_barrier")
stamp("estage")

p(f"s_lshl_b32 {sT[4]}, {sG}, 1")
p(f"s_add_u32 {sT[4]}, {sT[4]}, {sRB}")
p(f"s_lshl_b32 {sT[0]}, {sT[4]}, 8")
p(f"s_add_u32 {sT[0]}, {sT[0]}, {W_FY}")
poll(p, vL4, sT[0], "v13")
stamp("gotY")
p(f"s_and_b32 {sT[5]}, {sHP}, 1")
p(f"s_lshl_b32 {sT[0]}, {sT[5]}, 1")
p(f"s_xor_b32 {sT[0]}, {sT[0]}, {sW}")
p(f"s_lshl_b32 {sT[1]}, {sT[4]}, 2")
p(f"s_add_u32 {sT[0]}, {sT[0]}, {sT[1]}")
p(f"s_lshl_b32 {sT[0]}, {sT[0]}, 12")
p(f"s_add_u32 {sT[0]}, {sT[0]}, {W_ST2}")
for n in range(4):
    tst = p(f"buffer_load_dwordx4 {v(96+4*n,4)}, {vL16}, {sWS}, {sT[0]} offen offset:{1024*n} sc1")
yl = []
p(f"s_lshl_b32 {sT[1]}, {sW}, 13")
p(f"s_lshl_b32 {sT[0]}, {sT[4]}, 17")
p(f"s_add_u32 {sT[0]}, {sT[0]}, {sT[1]}")
p(f"s_add_u32 {sT[0]}, {sT[0]}, {W_Y}")
p(f"s_lshl_b32 {sT[2]}, {sT[5]}, 16")
p(f"s_add_u32 {sT[0]}, {sT[0]}, {sT[2]}")
for pp in range(4):
    for h2 in range(2):
        p(f"s_mov_b32 m0, {sT[1]}")
        for n in range(4):
            t = p(f"buffer_load_dwordx4 {vL16}, {sWS}, {sT[0]} offen offset:{1024*n} sc1 lds")
        p(f"s_add_u32 {sT[0]}, {sT[0]}, {4096 if h2 == 0 else 32768-4096}")
        p(f"s_add_u32 {sT[1]}, {sT[1]}, {4096 if h2 == 0 else 32768-4096}")
    yl.append(t)
    if pp == 1:
        p(f"s_lshl_b32 {sT[2]}, {sT[5]}, 17")
        p(f"s_sub_u32 {sT[0]}, {sT[0]}, {sT[2]}")
p.wv(tst)
p("v_pk_add_f32 v[96:97], v[96:97], v[100:101]")
p("v_pk_add_f32 v[98:99], v[98:99], v[102:103]")
p("v_pk_add_f32 v[104:105], v[104:105], v[108:109]")
p("v_pk_add_f32 v[106:107], v[106:107], v[110:111]")
p("v_pk_add_f32 v[96:97], v[96:97], v[104:105]")
p("v_pk_add_f32 v[98:99], v[98:99], v[106:107]")
p("v_permlane32_swap_b32 v96, v98")
p("v_permlane32_swap_b32 v97, v99")
p("v_add_f32 v96, v96, v98")
p("v_add_f32 v97, v97, v99")
p("v_permlane16_swap_b32 v96, v97")
p("v_add_f32 v96, v96, v97")
p("v_mul_f32 v96, 0x3b000000, v96")
p("v_mov_b32_dpp v97, v96 row_ror:8 row_mask:0xf bank_mask:0xf")
p("v_fma_f32 v97, -v96, v96, v97")
p("v_max_f32 v97, 0, v97")
p("v_add_f32 v97, 0x3727c5ac, v97")
p("v_rsq_f32 v98, v97")
p("v_sub_f32 v96, 0, v96")
p("v_mul_f32 v97, v97, v98")
p("v_cvt_pk_bf16_f32 v100, v96, v96")
p("v_cvt_pk_bf16_f32 v104, v97, v97")
p("v_and_b32 v105, 0xffff0000, v100")
p("v_and_b32 v104, 0xffff0000, v104")
p("v_sub_f32 v96, v96, v105")
p("v_sub_f32 v97, v97, v104")
p("v_cvt_pk_bf16_f32 v101, v96, v104")
p("v_cvt_pk_bf16_f32 v102, v104, v97")
p("v_mov_b32 v103, 0")
p("v_mul_f32 v99, v98, v98")
C1 = -2.0 * 0.7978845608028654 * 1.4426950408889634
C3 = C1 * 0.044715
import struct
f2h = lambda x: "0x%08x" % struct.unpack("<I", struct.pack("<f", x))[0]
p(f"v_mul_f32 v104, {f2h(C1)}, v98")
p(f"v_mul_f32 v105, {f2h(C3)}, v98")
p("v_mul_f32 v105, v105, v99")
p(f"v_and_b32 v12, 7, {vL}")
p(f"v_lshl_add_u32 v12, v12, 2, {vQ}")
p(f"s_lshl_b32 {sT[0]}, {sW}, 5")
p(f"v_add_u32 v12, {sT[0]}, v12")
p(f"v_lshlrev_b32 v13, 4, v12")
p(f"v_add_u32 v13, {L_EXT}, v13")
p(f"v_lshlrev_b32 v16, 3, v12")
p(f"v_add_u32 v16, {L_KC}, v16")
p(f"v_lshlrev_b32 v17, 2, v12")
p(f"v_add_u32 v17, {L_RS2}, v17")
p("s_mov_b32 exec_lo, 0x00ff00ff")
p("s_mov_b32 exec_hi, 0x00ff00ff")
p("ds_write_b128 v13, v[100:103]")
p("ds_write_b64 v16, v[104:105]")
p("ds_write_b32 v17, v99")
p("s_mov_b64 exec, -1")
vYA, vYB, vEX, vKA, vKX, vS1, vS3 = "v20", "v21", "v22", "v23", "v24", "v25", "v26"
p(f"v_add_u32 {vYA}, {L_Y}, {vL16}")
p(f"v_add_u32 {vYB}, {L_Y+65536}, {vL16}")
p(f"v_lshlrev_b32 {vEX}, 4, {vD16}")
p(f"v_add_u32 {vEX}, {L_EXT}, {vEX}")
p(f"v_lshlrev_b32 {vKA}, 3, {vD16}")
p(f"v_add_u32 {vKA}, {L_KC}, {vKA}")
p(f"v_lshl_add_u32 {vKX}, {vHF}, 7, {vKA}")
p(f"v_lshlrev_b32 v12, 4, {vD16}")
p(f"v_lshl_add_u32 v12, {vHF}, 8, v12")
p(f"v_and_b32 v13, 1, {vQ}")
p(f"v_lshl_add_u32 {vS1}, v13, 9, v12")
p(f"v_mul_u32_u24 v13, {ACT_RT}, v13")
p(f"v_add_u32 {vS3}, v13, v12")
sA1, sA3, sFA = sT[0], sT[1], sT[2]
p(f"s_lshl_b32 {sT[6]}, {sT[4]}, 1")
p(f"s_add_u32 {sT[6]}, {sT[6]}, {sT[5]}")
p(f"s_mul_i32 {sA1}, {sT[6]}, {2*ACT_RT}")
p(f"s_mul_i32 {sA3}, {sHP}, 6144")
p(f"s_add_u32 {sA1}, {sA1}, {sA3}")
p(f"s_lshr_b32 {sA3}, {sW}, 1")
p(f"s_mul_i32 {sA3}, {sA3}, 3072")
p(f"s_add_u32 {sA1}, {sA1}, {sA3}")
p(f"s_add_u32 {sA1}, {sA1}, {W_ACT}")
p(f"s_and_b32 {sFA}, {sW}, 1")
p(f"s_lshl_b32 {sA3}, {sFA}, 9")
p(f"s_add_u32 {sA3}, {sA3}, {sA1}")
p(f"s_add_u32 {sA3}, {sA3}, 1024")
p(f"s_lshl_b32 {sFA}, {sFA}, 11")
p(f"s_add_u32 {sA1}, {sA1}, {sFA}")
p(f"s_lshl_b32 {sFA}, {sT[6]}, 8")
p(f"s_lshl_b32 {sT[6]}, {sHP}, 4")
p(f"s_add_u32 {sFA}, {sFA}, {sT[6]}")
p(f"s_lshl_b32 {sT[6]}, {sW}, 2")
p(f"s_add_u32 {sFA}, {sFA}, {sT[6]}")
p(f"s_add_u32 {sFA}, {sFA}, {W_FACT}")
p(f"s_lshl_b32 {sT[6]}, {sT[5]}, 1")
p(f"s_sub_u32 {sT[6]}, 1, {sT[6]}")
p(f"s_mul_i32 {sT[7]}, {sT[6]}, {2*ACT_RT}")
p(f"s_lshl_b32 {sT[6]}, {sT[6]}, 8")
p("s_waitcnt lgkmcnt(0)")

vYF = 96
vACC = [80, 120]
def accreg(setn, tile, T):
    tab = [[80, 84, 88, 92, 32, 36], [120, 124, 128, 132, 136, 140]]
    return tab[setn][3 * tile + T]
vKC = 12
vP1 = 40
vP3 = 28
vE = [18, 19, 27, 56]


def gelu_mul(q, g, u, kc, out):
    for e in range(4):
        q(f"v_mul_f32 v{vE[e]}, v{g+e}, v{g+e}")
    for e in range(4):
        q(f"v_fma_f32 v{vE[e]}, v{vE[e]}, v{kc+1}, v{kc}")
    for e in range(4):
        q(f"v_mul_f32 v{vE[e]}, v{vE[e]}, v{g+e}")
    for e in range(4):
        q(f"v_exp_f32 v{vE[e]}, v{vE[e]}")
        q(f"v_mul_f32 v{u+e}, v{g+e}, v{u+e}")
    for e in range(4):
        q(f"v_add_f32 v{vE[e]}, 1.0, v{vE[e]}")
    for e in range(4):
        q(f"v_rcp_f32 v{vE[e]}, v{vE[e]}")
    for e in range(4):
        q(f"v_mul_f32 v{u+e}, v{u+e}, v{vE[e]}")
    q(f"v_cvt_pk_bf16_f32 v{out}, v{u}, v{u+1}")
    q(f"v_cvt_pk_bf16_f32 v{out+1}, v{u+2}, v{u+3}")


def d_main(pp):
    q = Prog()
    q.wv(yl[pp])
    q("s_barrier")
    steps = [(tile, ks) for tile in range(2) for ks in range(17)]
    rd = {}

    def yread(n):
        tile, ks = steps[n]
        rt = 2 * pp + tile
        r = v(vYF + 4 * (n % NS), 4)
        if ks == 16:
            return q(f"ds_read_b128 {r}, {vEX} offset:{256*rt}")
        return q(f"ds_read_b128 {r}, {vYB if rt >= 4 else vYA} offset:{16384*(rt&3)+1024*ks}")
    for n in range(4):
        rd[n] = yread(n)
    for n, (tile, ks) in enumerate(steps):
        if n + 4 < len(steps):
            rd[n + 4] = yread(n + 4)
        q.wl(rd[n])
        for T in range(3):
            acc = accreg(pp & 1, tile, T)
            w_ = v(vAE + 4 * T, 4) if ks == 16 else a(12 * ks + 4 * T, 4)
            q(f"v_mfma_f32_16x16x32_bf16 {v(acc,4)}, {w_}, {v(vYF+4*(n%NS),4)}, {'0' if ks==0 else v(acc,4)}")
    return q


def d_epi(pp):
    q = Prog()
    A = lambda tile, T: accreg(pp & 1, tile, T)
    q(f"ds_read_b64 {v(vKC,2)}, {vKA} offset:{256*pp}")
    q(f"ds_read_b64 {v(vKC+2,2)}, {vKA} offset:{256*pp+128}")
    t = q(f"ds_read_b64 {v(vKC+4,2)}, {vKX} offset:{256*pp}")
    for e in range(4):
        q(f"v_permlane32_swap_b32 v{A(0,2)+e}, v{A(1,2)+e}")
    q.wl(t)
    gelu_mul(q, A(0, 0), A(0, 1), vKC, vP1)
    gelu_mul(q, A(1, 0), A(1, 1), vKC + 2, vP1 + 2)
    q(f"v_permlane32_swap_b32 v{vP1}, v{vP1+2}")
    q(f"v_permlane32_swap_b32 v{vP1+1}, v{vP1+3}")
    q(f"buffer_store_dwordx4 {v(vP1,4)}, {vS1}, {sWS}, {sA1} offen{SC}")
    q(f"s_add_u32 {sA1}, {sA1}, {ACT_RT}" if pp & 1 == 0 else f"s_sub_u32 {sA1}, {sA1}, {ACT_RT}")
    gelu_mul(q, A(0, 2), A(1, 2), vKC + 4, vP3 + 2 * (pp & 1))
    st = None
    if pp & 1:
        q(f"v_permlane16_swap_b32 v{vP3}, v{vP3+2}")
        q(f"v_permlane16_swap_b32 v{vP3+1}, v{vP3+3}")
        st = q(f"buffer_store_dwordx4 {v(vP3,4)}, {vS3}, {sWS}, {sA3} offen{SC}")
        q(f"s_add_u32 {sA1}, {sA1}, {sT[7]}")
        q(f"s_add_u32 {sA3}, {sA3}, {sT[7]}")
    return q, st


p.ext(d_main(0))
stamp("d0")
for pp in range(1, 4):
    ep, st = d_epi(pp - 1)
    if pp == 3:
        f = Prog()
        publish_flag(f, sFA, st1)
        f(f"s_add_u32 {sFA}, {sFA}, {sT[6]}")
        ep.L = ep.L[:40] + [f.L] + ep.L[40:]
    if st is not None:
        st1 = st
    p.ext(merge(d_main(pp), ep, per=1.6, start=3))
stamp("dMain")
ep, st = d_epi(3)
p.ext(ep)
publish_flag(p, sFA, st)
stamp("pubAct")

vEA = 80
def eacc(rel):
    return v(vEA, 16) if rel == 0 else a(16 * (rel - 1), 16)
NF = 32
p(f"s_lshl_b32 {sT[4]}, {sT[3]}, 8")
p(f"s_add_u32 {sT[4]}, {sT[4]}, {W_FACT}")
p(f"s_mul_i32 {sT[5]}, {sT[3]}, {2*ACT_RT}")
p(f"s_add_u32 {sT[5]}, {sT[5]}, {W_ACT}")
p(f"s_lshr_b32 {sT[0]}, {sW}, 1")
p(f"s_mul_i32 {sT[0]}, {sT[0]}, {ACT_RT}")
p(f"v_add_u32 v20, {sT[0]}, {vL16}")
p(f"s_sub_u32 {sT[0]}, {ACT_RT}, {sT[0]}")
p(f"v_add_u32 v21, {sT[0]}, {vL16}")
p(f"s_and_b32 {sT[7]}, {sCR}, 1")
p(f"v_bfe_u32 v12, {vL}, 2, 3")
p(f"v_lshlrev_b32 v12, 5, v12")
p(f"v_and_b32 v13, 3, {vL}")
p(f"v_lshl_add_u32 v12, v13, 2, v12")
p(f"s_lshl_b32 {sT[0]}, {sT[7]}, 4")
p(f"v_add_u32 v22, {sT[0]}, v12")
p(f"v_xor_b32 v23, 16, v22")
p(f"s_mul_i32 {sT[7]}, {sT[7]}, 6")
for half in range(2):
    poll(p, "v23" if half else "v22", sT[4], "v13")
    stamp(f"gotAct{half}")
    al = []
    for i_ in range(11):
        p(f"s_add_u32 {sT[0]}, {sKS[i_]}, {sT[7]}")
        p(f"s_lshl_b32 {sT[0]}, {sT[0]}, 10")
        p(f"s_add_u32 {sT[0]}, {sT[0]}, {sT[5]}")
        for rt in range(2):
            al.append(p(f"buffer_load_dwordx4 {a(64+4*(2*i_+rt),4)}, {'v21' if rt else 'v20'}, {sWS}, {sT[0]} offen sc1"))
    for i_ in range(11):
        for rt in range(2):
            p.wv(al[2 * i_ + rt])
            for ct in range(2):
                rel = 2 * rt + ct
                first = half == 0 and i_ == 0
                p(f"v_mfma_f32_32x32x16_bf16 {eacc(rel)}, {rg(wd_reg(11*half+i_,ct),4)}, {a(64+4*(2*i_+rt),4)}, {'0' if first else eacc(rel)}")
    p(f"s_sub_u32 {sT[7]}, 6, {sT[7]}")
stamp("eGemm")
p("s_barrier")
for rel in range(1, 4):
    p(f"s_xor_b32 {sT[0]}, {sW}, {rel}")
    p(f"s_mul_i32 {sT[0]}, {sT[0]}, 12288")
    p(f"v_add_u32 v{12+rel}, {sT[0]}, {vL16}")
for rel in range(1, 4):
    for n in range(4):
        p(f"ds_write_b128 v{12+rel}, {a(16*(rel-1)+4*n,4)} offset:{4096*(rel-1)+1024*n}")
p(f"s_mul_i32 {sT[0]}, {sW}, 12288")
p(f"v_add_u32 v12, {sT[0]}, {vL16}")
p(f"s_xor_b32 {sT[0]}, {sCR}, {sHP}")
p(f"s_and_b32 {sT[0]}, {sT[0]}, 1")
p(f"s_lshl_b32 {sT[0]}, {sT[0]}, 8")
p(f"s_lshr_b32 {sT[1]}, {sW}, 1")
p(f"s_lshl_b32 {sT[1]}, {sT[1]}, 7")
p(f"s_add_u32 {sT[0]}, {sT[0]}, {sT[1]}")
p(f"s_add_u32 {sT[0]}, {sT[0]}, {L_RS2}")
p(f"v_lshl_add_u32 v16, {vR32}, 2, {sT[0]}")
p("ds_read_b32 v16, v16")
p(f"ds_read_b128 v[32:35], {vMV} offset:3072")
p(f"ds_read_b128 v[36:39], {vMV} offset:3088")
p("s_waitcnt lgkmcnt(0)")
p("s_barrier")
rr = []
for rel in range(1, 4):
    for n in range(4):
        rr.append(p(f"ds_read_b128 {v(96+16*(rel-1)+4*n,4)}, v12 offset:{4096*(rel-1)+1024*n}"))
for e in range(8):
    unpack(p, v(32 + e), v(40 + 2 * e), v(41 + 2 * e))
for e in range(8):
    p(f"v_pk_mul_f32 {v(40+2*e,2)}, {v(40+2*e,2)}, v[16:17] op_sel_hi:[1,0]")
for rel in range(1, 4):
    for n in range(4):
        p.wl(rr[4 * (rel - 1) + n])
        for e in range(2):
            r = vEA + 4 * n + 2 * e
            p(f"v_pk_add_f32 {v(r,2)}, {v(r,2)}, {v(96+16*(rel-1)+4*n+2*e,2)}")
for e in range(8):
    r = vEA + 2 * e
    p(f"v_pk_fma_f32 {v(r,2)}, {v(r,2)}, {v(40+2*e,2)}, {v(vX1+2*e,2)}")
pack(p, vEA, 32, 8)
p(f"buffer_store_dwordx4 v[32:35], {vXO}, {sOUT}, {sXO} offen")
p(f"buffer_store_dwordx4 v[36:39], {vXO}, {sOUT}, {sXO} offen offset:16")
if STAMPS:
    p("s_waitcnt vmcnt(0)")
    stamp("end")
    p("s_waitcnt lgkmcnt(0)")
    p("v_mov_b32 v12, 0")
    for i_ in range(nstamp[0] + 1):
        p(f"v_writelane_b32 v12, s{SSTAMP0+2*i_}, {i_}")
    p(f"v_writelane_b32 v12, {sXCC}, 31")
    p(f"s_lshl_b32 {sT[0]}, s2, 10")
    p(f"s_add_u32 {sT[0]}, {sT[0]}, {W_STAMP}")
    p(f"v_lshlrev_b32 v13, 2, v0")
    p(f"buffer_store_dword v12, v13, {sWS}, {sT[0]} offen")
p.label("END")
p("s_endpgm")

body = p.finish()
ref = open(f"cdna_kernels/{NAME}.s.ref").read().split("\n")
head = []
for ln in ref:
    if ln.startswith("; @launch"):
        head.append("; @launch grid=(256,1,1) block=(256,1,1) lds=163840")
        continue
    head.append(ln)
    if ln.startswith(NAME + "_kernel:"):
        break
tail = f"""
.section .rodata,"a"
.p2align 6
.amdhsa_kernel {NAME}_kernel
  .amdhsa_next_free_vgpr 512
  .amdhsa_next_free_sgpr 102
  .amdhsa_accum_offset 256
  .amdhsa_group_segment_fixed_size 0
  .amdhsa_kernarg_size 104
  .amdhsa_user_sgpr_count 2
  .amdhsa_user_sgpr_kernarg_segment_ptr 1
  .amdhsa_system_sgpr_workgroup_id_x 1
.end_amdhsa_kernel
"""
open(OUTF, "w").write("\n".join(head) + "\n" + body + tail)
if STAMPS:
    open(OUTF + ".names", "w").write(",".join(stamp_names))
print("written", OUTF, "lines", body.count("\n"), "nops", p.nnops, "stamps", stamp_names)
```

```python
import sys
from asmlib import *

NAME = "adaLN_cond__linear_kernel_hedgehog__geglu_ffn__prompt"
STAMPS = "--stamps" in sys.argv
OUTF = [a for a in sys.argv[1:] if not a.startswith("--")]
OUTF = OUTF[0] if OUTF else f"cdna_kernels/{NAME}.s"

W_EPOCH = 0
W_FH = 0x1000
W_FKV = 0x2000
W_FO = 0x3000
W_FY = 0x4000
W_FACT = 0x5000
W_STAT1 = 0x8000
W_MODP = 0x10000
W_MODF = 0x40000
W_Z = 0x80000
W_KV = 0x100000
W_H = 0x200000
W_O = 0x400000
W_Y = 0x600000
W_ST2 = 0x800000
W_ACT = 0xA00000
W_STAMP = 0x1100000
WS_BYTES = 0x1200000
ACT_RT = 96 * 1024

K = 1024
L_WK, L_WV, L_WQ = 0, 32 * K, 64 * K
L_MODW = 96 * K
L_PL = 96 * K
L_WO, L_O = 0, 64 * K
L_Y = 0
L_MISC = 148 * K
L_SILU = L_MISC
L_AS = L_SILU + 512
L_WPHI = L_AS + 128
L_KVS = L_WPHI + 1024
L_MODL = L_KVS + 2304
L_EXT = L_MODL + 4096
L_KC = L_EXT + 2048
L_RS2 = L_KC + 1024
assert L_RS2 + 512 <= 160 * K
DCH = 12352
DPART = 3088

sX, sWQKV, sWO, sWG, sWU, sWD, sWM, sOUT, sWS = [f"s[{4+4*i}:{7+4*i}]" for i in range(9)]
sC, sPHI = "s[40:41]", "s[42:43]"
sTAG, sG, sJ, sW, sRB, sHP, sCR, sCC = [f"s{44+i}" for i in range(8)]
sGU = "s[52:55]"
sT = [f"s{56+i}" for i in range(8)]
sCNT = "s64"
sL2E = "s65"
sEX = "s[66:67]"
sKS = [f"s{68+i}" for i in range(11)]
sXCC = "s79"
SSTAMP0 = 80
SC = " sc1"
SPIN = 30000

p = Prog()
nstamp = [0]
stamp_names = []
want = None
for a in sys.argv:
    if a.startswith("--only="):
        want = a[7:].split(",")


def stamp(name, q=None):
    q = q or p
    if not STAMPS or (want is not None and name not in want):
        return
    k = SSTAMP0 + 2 + 2 * nstamp[0]
    if k + 1 > 101:
        return
    q(f"s_memtime s[{k}:{k+1}]")
    nstamp[0] += 1
    stamp_names.append(name)


def v(n, c=1):
    return f"v{n}" if c == 1 else f"v[{n}:{n+c-1}]"


def a(n, c=1):
    return f"a{n}" if c == 1 else f"a[{n}:{n+c-1}]"


def srd_lo(s):
    return int(s[2:s.index(":")])


def dma(q, vaddr, srd, soff, m0reg_or_imm, extra=""):
    q(f"s_mov_b32 m0, {m0reg_or_imm}")
    return q(f"buffer_load_dwordx4 {vaddr}, {srd}, {soff} offen{extra} lds")


def publish_flag(q, soff, wait=None):
    if wait is None:
        q("s_waitcnt vmcnt(0)")
    else:
        q.wv(wait)
    q("s_mov_b64 exec, 1")
    r = q(f"buffer_store_dword {vTAG}, off, {sWS}, {soff}{SC}")
    q("s_mov_b64 exec, -1")
    return r


def poll(q, vaddr, soff, vtmp):
    lp, dn = q.newlabel("POLL"), q.newlabel("DONE")
    q(f"s_mov_b32 {sCNT}, {SPIN}")
    q.flush()
    q.label(lp)
    q(f"buffer_load_dword {vtmp}, {vaddr}, {sWS}, {soff} offen sc1")
    q(f"s_sub_u32 {sCNT}, {sCNT}, 1")
    q(f"s_cbranch_scc1 {dn}")
    q("s_waitcnt vmcnt(0)")
    q(f"v_cmp_ne_u32 vcc, {sTAG}, {vtmp}")
    q(f"s_cbranch_vccnz {lp}")
    q.label(dn)
    q("s_waitcnt vmcnt(0)")


def unpack(q, src, lo, hi):
    q(f"v_lshlrev_b32 {lo}, 16, {src}")
    q(f"v_and_b32 {hi}, 0xffff0000, {src}")


vL, vL16, vTAG, vL4 = "v1", "v2", "v3", "v4"
vTRN, vTRV = "v5", "v6"
vR32 = "v7"
vHF = "v8"
vQ = "v9"
vD16 = "v10"
T0 = 12

p(f"s_cmp_ge_u32 s2, 256")
p(f"s_cbranch_scc1 END")
if STAMPS:
    p(f"s_memrealtime s[{SSTAMP0}:{SSTAMP0+1}]")
stamp("start")
for s_, off in ((sWS, 96), (sC, 64), (sWM, 72), (sX, 0), (sWQKV, 8), (sPHI, 16), (sWO, 24), (sWG, 40), (sWU, 48), (sWD, 56), (sOUT, 80)):
    lo = srd_lo(s_)
    p(f"s_load_dwordx2 s[{lo}:{lo+1}], s[0:1], {off}")
for s_, nb in ((sX, 2048 * 1024), (sWQKV, 512 * 3072), (sWO, 512 * 1024), (sWG, 512 * 2752), (sWU, 512 * 2752), (sWD, 1376 * 1024),
               (sWM, 512 * 6144), (sOUT, 2048 * 1024), (sWS, WS_BYTES), (sGU, 512 * 2752)):
    lo = srd_lo(s_)
    p(f"s_mov_b32 s{lo+2}, {nb}")
    p(f"s_mov_b32 s{lo+3}, 0x20000")
p(f"v_lshrrev_b32 v12, 6, v0")
p(f"v_and_b32 {vL}, 63, v0")
p(f"v_readfirstlane_b32 {sW}, v12")
p(f"s_and_b32 {sG}, s2, 7")
p(f"s_lshr_b32 {sJ}, s2, 3")
p(f"s_lshr_b32 {sRB}, {sJ}, 4")
p(f"s_and_b32 {sHP}, {sJ}, 15")
p(f"s_lshr_b32 {sCR}, {sJ}, 3")
p(f"s_and_b32 {sCC}, {sJ}, 7")
p(f"s_mov_b32 {sL2E}, 0x3fb8aa3b")
p(f"s_getreg_b32 {sXCC}, hwreg(HW_REG_XCC_ID, 0, 4)")
p(f"v_lshlrev_b32 {vL16}, 4, {vL}")
p(f"v_lshlrev_b32 {vL4}, 2, {vL}")
p(f"v_and_b32 {vR32}, 31, {vL}")
p(f"v_lshrrev_b32 {vHF}, 5, {vL}")
p(f"v_lshrrev_b32 {vQ}, 4, {vL}")
p(f"v_and_b32 {vD16}, 15, {vL}")
p(f"v_bfe_u32 v12, {vL}, 2, 2")
p(f"v_lshlrev_b32 v12, 6, v12")
p(f"v_lshl_add_u32 v12, {vHF}, 9, v12")
p(f"v_and_b32 v13, 3, {vL}")
p(f"v_and_b32 v14, 1, {vQ}")
p(f"v_lshl_add_u32 v15, v14, 2, v13")
p(f"v_lshl_add_u32 {vTRN}, v15, 3, v12")
p(f"v_and_b32 v16, 1, v15")
p(f"v_lshrrev_b32 v17, 1, v15")
p(f"v_lshl_add_u32 v16, v16, 2, v17")
p(f"v_lshl_add_u32 {vTRV}, v16, 3, v12")
vAM, vAX, vAW, vAS = "v20", "v21", "v22", "v23"
p(f"v_lshrrev_b32 v12, 2, {vL}")
p(f"v_mul_u32_u24 v14, 6144, v12")
p(f"v_lshrrev_b32 v15, 1, v13")
p(f"v_lshl_add_u32 v14, v15, 10, v14")
p(f"v_and_b32 v15, 1, v13")
p(f"v_lshl_add_u32 {vAM}, v15, 4, v14")
p(f"v_mul_u32_u24 v14, 3072, v12")
p(f"v_lshl_add_u32 {vAW}, v13, 4, v14")
p(f"v_lshlrev_b32 v14, 10, {vR32}")
p(f"v_lshl_add_u32 {vAX}, {vHF}, 4, v14")
p(f"v_lshrrev_b32 v14, 3, {vL}")
p(f"v_and_b32 v15, 7, {vL}")
p(f"v_lshlrev_b32 v14, 10, v14")
p(f"v_lshl_add_u32 {vAS}, v15, 4, v14")
p(f"s_lshl_b32 {sT[0]}, {sG}, 7")
p(f"v_lshl_add_u32 v24, {vR32}, 2, {sT[0]}")
p("s_waitcnt lgkmcnt(0)")
stamp("kernarg")
lo = srd_lo(sWS)
p(f"s_load_dword {sTAG}, s[{lo}:{lo+1}], {W_EPOCH}")

vXS = 32
vXR = 64
LA3, LA_J = "A_W3", "A_J1"
p(f"s_cmp_eq_u32 {sW}, 3")
p(f"s_cbranch_scc1 {LA3}")
p.rb()
tc = p(f"global_load_dword v25, v24, {sC}")
p(f"s_mul_i32 {sT[0]}, {sG}, {64*6144}")
p(f"s_lshl_b32 {sT[1]}, {sW}, 11")
p(f"s_add_u32 {sT[0]}, {sT[0]}, {sT[1]}")
p(f"s_lshl_b32 {sT[1]}, {sJ}, 5")
p(f"s_add_u32 {sT[0]}, {sT[0]}, {sT[1]}")
p(f"s_lshl_b32 {sT[2]}, {sW}, 12")
p(f"s_add_u32 {sT[2]}, {sT[2]}, {L_MODW}")
for n in range(4):
    tm = dma(p, vAM, sWM, sT[0], sT[2])
    if n < 3:
        p(f"s_add_u32 {sT[0]}, {sT[0]}, {16*6144}")
        p(f"s_add_u32 {sT[2]}, {sT[2]}, 1024")
p(f"s_branch {LA_J}")
p.re_()
p.label(LA3)
p.rb()
p(f"s_lshl_b32 {sT[0]}, {sG}, 18")
p(f"s_lshl_b32 {sT[1]}, {sJ}, 13")
p(f"s_add_u32 {sT[0]}, {sT[0]}, {sT[1]}")
for n in range(8):
    tx = p(f"buffer_load_dwordx4 {v(vXR+4*n,4)}, {vAS}, {sX}, {sT[0]} offen offset:{128*n}")
p(f"s_lshl_b32 {sT[1]}, {sHP}, 10")
p(f"v_add_u32 v25, {sT[1]}, {vL16}")
p(f"s_mov_b32 m0, {L_WPHI}")
p(f"global_load_lds_dwordx4 v25, {sPHI}")
p.re_()
p.label(LA_J)
p(f"s_lshl_b32 {sT[0]}, {sG}, 18")
p(f"s_lshl_b32 {sT[1]}, {sW}, 16")
p(f"s_add_u32 {sT[0]}, {sT[0]}, {sT[1]}")
p(f"s_lshl_b32 {sT[1]}, {sJ}, 5")
p(f"s_add_u32 {sT[0]}, {sT[0]}, {sT[1]}")
p(f"s_add_u32 {sT[1]}, {sT[0]}, 32768")
first_common = p(f"buffer_load_dwordx4 {v(vXS,4)}, {vAX}, {sX}, {sT[0]} offen")
p(f"buffer_load_dwordx4 {v(vXS+4,4)}, {vAX}, {sX}, {sT[1]} offen")


def wqkv_dma(q, part, lbase):
    q(f"s_mul_i32 {sT[0]}, {sW}, {128*3072}")
    q(f"s_lshl_b32 {sT[1]}, {sHP}, 6")
    q(f"s_add_u32 {sT[0]}, {sT[0]}, {sT[1]}")
    q(f"s_add_u32 {sT[0]}, {sT[0]}, {part*1024}")
    q(f"s_lshl_b32 {sT[2]}, {sW}, 13")
    q(f"s_add_u32 {sT[2]}, {sT[2]}, {lbase}")
    for n in range(8):
        t = dma(q, vAW, sWQKV, sT[0], sT[2])
        if n < 7:
            q(f"s_add_u32 {sT[0]}, {sT[0]}, {16*3072}")
            q(f"s_add_u32 {sT[2]}, {sT[2]}, 1024")
    return t


NCOMMON = 18
wqkv_dma(p, 1, L_WK)
wqkv_dma(p, 2, L_WV)
if "--touch" in sys.argv:
    NCOMMON = 19
    p(f"v_lshlrev_b32 v12, 7, {vL}")
    p(f"s_mul_i32 {sT[0]}, s2, 5504")
    p(f"s_lshl_b32 {sT[1]}, s2, 11")
    p(f"s_mov_b64 exec, 0")
    p(f"s_cmp_eq_u32 {sW}, 1")
    p(f"s_cselect_b32 exec_lo, -1, 0")
    p(f"s_cselect_b32 exec_hi, 0x7ff, 0")
    p(f"buffer_load_dword v11, v12, {sWG}, {sT[0]} offen")
    p(f"s_cmp_eq_u32 {sW}, 2")
    p(f"s_cselect_b32 exec_lo, -1, 0")
    p(f"s_cselect_b32 exec_hi, 0x7ff, 0")
    p(f"buffer_load_dword v11, v12, {sWU}, {sT[0]} offen")
    p(f"s_cmp_eq_u32 {sW}, 3")
    p(f"s_cselect_b32 exec_lo, -1, 0")
    p(f"s_cselect_b32 exec_hi, 0x7ff, 0")
    p(f"buffer_load_dword v11, v12, {sWD}, {sT[0]} offen")
    p(f"s_cmp_eq_u32 {sW}, 0")
    p(f"s_cselect_b32 exec_lo, 0xffff, 0")
    p(f"s_mov_b32 exec_hi, 0")
    p(f"buffer_load_dword v11, v12, {sWO}, {sT[1]} offen")
    p(f"s_mov_b64 exec, -1")
p("s_waitcnt lgkmcnt(0)")
p(f"s_add_u32 {sTAG}, {sTAG}, 0x9E3779B1")
p(f"v_mov_b32 {vTAG}, {sTAG}")
LB3, LB_J = "A_W3b", "A_J2"
p(f"s_cmp_eq_u32 {sW}, 3")
p(f"s_cbranch_scc1 {LB3}")
p.rb()
p(f"s_waitcnt vmcnt({NCOMMON+4})")
unpack(p, "v25", "v26", "v27")
for r in (26, 27):
    p(f"v_mul_f32 v{r+2}, 0xbfb8aa3b, v{r}")
for r in (28, 29):
    p(f"v_exp_f32 v{r}, v{r}")
for r in (28, 29):
    p(f"v_add_f32 v{r}, 1.0, v{r}")
for r in (28, 29):
    p(f"v_rcp_f32 v{r}, v{r}")
for r in (26, 27):
    p(f"v_mul_f32 v{r}, v{r}, v{r+2}")
p("v_cvt_pk_bf16_f32 v26, v26, v27")
p(f"s_lshl_b32 {sT[0]}, {sW}, 7")
p(f"s_add_u32 {sT[0]}, {sT[0]}, {L_SILU}")
p(f"v_lshl_add_u32 v27, {vR32}, 2, {sT[0]}")
p(f"v_lshl_add_u32 v28, {vHF}, 4, {sT[0]}")
p("ds_write_b32 v27, v26")
for s_ in range(4):
    p(f"ds_read_b128 {v(64+4*s_,4)}, v28 offset:{32*s_}")
p(f"s_lshl_b32 {sT[0]}, {sW}, 12")
p(f"s_add_u32 {sT[0]}, {sT[0]}, {L_MODW}")
p(f"v_add_u32 v29, {sT[0]}, {vTRN}")
p(f"s_waitcnt vmcnt({NCOMMON})")
stamp("wmod")
tr = []
for s_ in range(4):
    p(f"ds_read_b64_tr_b16 {v(80+4*s_,2)}, v29 offset:{1024*s_}")
    tr.append(p(f"ds_read_b64_tr_b16 {v(82+4*s_,2)}, v29 offset:{1024*s_+256}"))
for s_ in range(4):
    p.wl(tr[s_])
    p(f"v_mfma_f32_32x32x16_bf16 {v(96,16)}, {v(64+4*s_,4)}, {v(80+4*s_,4)}, {'0' if s_==0 else v(96,16)}")
p(f"s_lshl_b32 {sT[0]}, {sJ}, 3")
p(f"s_add_u32 {sT[0]}, {sT[0]}, {sG}")
p(f"s_mul_i32 {sT[0]}, {sT[0]}, 768")
p(f"s_lshl_b32 {sT[1]}, {sW}, 8")
p(f"s_add_u32 {sT[0]}, {sT[0]}, {sT[1]}")
p(f"s_add_u32 {sT[0]}, {sT[0]}, {W_MODP}")
p(f"v_lshlrev_b32 v28, 3, {vL}")
p(f"v_mov_b32 v97, {vTAG}")
p("s_mov_b64 exec, 0xffffffff")
p(f"buffer_store_dwordx2 v[96:97], v28, {sWS}, {sT[0]} offen sc1")
p("s_mov_b64 exec, -1")
p.flush()
p(f"s_branch {LB_J}")
p.re_()
p.label(LB3)
p.rb()
p("v_mov_b32 v26, 0x3f803f80")
for r in range(28, 32):
    p(f"v_mov_b32 v{r}, 0")
for n in range(8):
    p(f"s_waitcnt vmcnt({NCOMMON+1+7-n})")
    for e in range(4):
        x = vXR + 4 * n + e
        p(f"v_dot2c_f32_bf16 v{28+(e&1)}, v{x}, v26")
        p(f"v_dot2c_f32_bf16 v{30+(e&1)}, v{x}, v{x}")
p("v_add_f32 v28, v28, v29")
p("v_add_f32 v30, v30, v31")
for ctl in ("quad_perm:[1,0,3,2]", "quad_perm:[2,3,0,1]", "row_half_mirror"):
    p(f"v_add_f32_dpp v28, v28, v28 {ctl} row_mask:0xf bank_mask:0xf")
    p(f"v_add_f32_dpp v30, v30, v30 {ctl} row_mask:0xf bank_mask:0xf")
p("v_mul_f32 v28, 0x3b000000, v28")
p("v_mul_f32 v30, 0x3b000000, v30")
p("v_fma_f32 v30, -v28, v28, v30")
p("v_max_f32 v30, 0, v30")
p("v_add_f32 v30, 0x3727c5ac, v30")
p("v_rsq_f32 v29, v30")
p(f"v_mov_b32 v30, {vTAG}")
p(f"v_mov_b32 v31, {sXCC}")
p(f"s_lshl_b32 {sT[0]}, {sG}, 12")
p(f"s_lshl_b32 {sT[1]}, {sJ}, 7")
p(f"s_add_u32 {sT[0]}, {sT[0]}, {sT[1]}")
p(f"s_add_u32 {sT[0]}, {sT[0]}, {W_STAT1}")
p(f"v_lshlrev_b32 v27, 1, {vL}")
p("s_mov_b32 exec_lo, 0x01010101")
p("s_mov_b32 exec_hi, 0x01010101")
p(f"buffer_store_dwordx4 v[28:31], v27, {sWS}, {sT[0]} offen sc1")
p("s_mov_b64 exec, -1")
p.flush()
p.re_()
p.label(LB_J)
stamp("pubA")

vRT = 56
p(f"v_and_b32 v12, 1, {vQ}")
p(f"v_lshlrev_b32 v12, 3, v12")
p(f"v_sub_u32 v12, {vD16}, v12")
p(f"v_and_b32 v13, 1, v12")
p(f"v_lshlrev_b32 v13, 4, v13")
p(f"v_lshlrev_b32 v13, v13, 0x3f80") if False else None
p(f"v_mov_b32 v14, 0x3f80")
p(f"v_lshlrev_b32 v13, v13, v14")
p(f"v_ashrrev_i32 v12, 1, v12")
for n in range(4):
    p(f"v_cmp_eq_u32 vcc, {n}, v12")
    p(f"v_cndmask_b32 v{vRT+n}, 0, v13, vcc")
for i_ in range(11):
    p(f"s_mul_i32 {sT[0]}, {sW}, 11")
    p(f"s_add_u32 {sT[0]}, {sT[0]}, {i_}")
    p(f"s_mul_i32 {sT[1]}, {sT[0]}, 43")
    p(f"s_lshr_b32 {sT[1]}, {sT[1]}, 8")
    p(f"s_mul_i32 {sT[1]}, {sT[1]}, 6")
    p(f"s_add_u32 {sKS[i_]}, {sT[0]}, {sT[1]}")
lo, lg, lu = srd_lo(sGU), srd_lo(sWG), srd_lo(sWU)
p(f"s_bitcmp0_b32 {sW}, 0")
p(f"s_cselect_b64 s[{lo}:{lo+1}], s[{lg}:{lg+1}], s[{lu}:{lu+1}]")


def mod_gather(q, addone_lo, addone_hi):
    lp, dn = q.newlabel("MP"), q.newlabel("MD")
    q(f"s_mul_i32 {sT[0]}, {sJ}, {8*768}")
    q(f"s_lshl_b32 {sT[1]}, {sW}, 8")
    q(f"s_add_u32 {sT[0]}, {sT[0]}, {sT[1]}")
    q(f"s_add_u32 {sT[0]}, {sT[0]}, {W_MODP}")
    q(f"v_mul_u32_u24 v12, 768, {vQ}")
    q(f"v_lshl_add_u32 v12, {vD16}, 4, v12")
    q(f"s_mov_b32 {sCNT}, {SPIN}")
    q.flush()
    q.label(lp)
    q(f"buffer_load_dwordx4 v[16:19], v12, {sWS}, {sT[0]} offen sc1")
    q(f"buffer_load_dwordx4 v[24:27], v12, {sWS}, {sT[0]} offen offset:{4*768} sc1")
    q(f"s_sub_u32 {sCNT}, {sCNT}, 1")
    q(f"s_cbranch_scc1 {dn}")
    q("s_waitcnt vmcnt(0)")
    q(f"v_xor_b32 v13, {sTAG}, v17")
    q(f"v_xor_b32 v14, {sTAG}, v19")
    q(f"v_xor_b32 v15, {sTAG}, v25")
    q(f"v_xor_b32 v28, {sTAG}, v27")
    q("v_or_b32 v13, v13, v14")
    q("v_or3_b32 v13, v13, v15, v28")
    q("v_cmp_ne_u32 vcc, 0, v13")
    q(f"s_cbranch_vccnz {lp}")
    q.label(dn)
    q("s_waitcnt vmcnt(0)")
    q("v_add_f32 v16, v16, v24")
    q("v_add_f32 v18, v18, v26")
    q("v_permlane32_swap_b32 v16, v18")
    q("v_add_f32 v12, v16, v18")
    q("v_mov_b32 v13, v12")
    q("v_permlane16_swap_b32 v13, v12")
    q("v_add_f32 v12, v12, v13")
    q("v_cvt_pk_bf16_f32 v12, v12, v12")
    q("v_and_b32 v12, 0xffff0000, v12")


p(f"s_cmp_eq_u32 {sW}, 0")
p("s_cbranch_scc0 A_J3")
p.rb()
mod_gather(p, 0, 1)
p("v_add_f32 v13, 1.0, v12")
p("v_cvt_pk_bf16_f32 v13, v13, v13")
p("v_and_b32 v13, 0xffff0000, v13")
p(f"v_cmp_lt_u32 vcc, 7, {vD16}")
p("v_cndmask_b32 v12, v12, v13, vcc")
p(f"v_lshlrev_b32 v13, 3, {vD16}")
p(f"v_lshl_add_u32 v13, {vHF}, 2, v13")
p(f"ds_write_b32 v13, v12 offset:{L_AS}") if L_AS < 65536 else None
if L_AS >= 65536:
    p(f"v_add_u32 v13, {L_AS}, v13")
    p(f"ds_write_b32 v13, v12")
p.flush()
p.re_()
p.label("A_J3")
lp, dn = "A_SP", "A_SD"
p(f"s_lshl_b32 {sT[0]}, {sG}, 12")
p(f"s_lshl_b32 {sT[1]}, {sW}, 10")
p(f"s_add_u32 {sT[0]}, {sT[0]}, {sT[1]}")
p(f"s_add_u32 {sT[0]}, {sT[0]}, {W_STAT1}")
p(f"v_lshlrev_b32 v12, 4, {vR32}")
p(f"s_mov_b32 {sCNT}, {SPIN}")
p.flush()
p.label(lp)
p(f"buffer_load_dwordx4 v[16:19], v12, {sWS}, {sT[0]} offen sc1")
p(f"buffer_load_dwordx4 v[24:27], v12, {sWS}, {sT[0]} offen offset:512 sc1")
p(f"s_sub_u32 {sCNT}, {sCNT}, 1")
p(f"s_cbranch_scc1 {dn}")
p("s_waitcnt vmcnt(0)")
p(f"v_xor_b32 v13, {sTAG}, v18")
p(f"v_xor_b32 v14, {sTAG}, v26")
p("v_or_b32 v13, v13, v14")
p("v_cmp_ne_u32 vcc, 0, v13")
p(f"s_cbranch_vccnz {lp}")
p.label(dn)
p("s_waitcnt vmcnt(0)")
stamp("gotStat")
for t in range(2):
    for e in range(4):
        unpack(p, v(vXS + 4 * t + e), v(64 + 8 * t + 2 * e), v(65 + 8 * t + 2 * e))
p("v_mul_f32 v16, v16, v17")
p("v_mul_f32 v24, v24, v25")
for t in range(2):
    b = 16 + 8 * t
    for e in range(4):
        r = 64 + 8 * t + 2 * e
        p(f"v_pk_fma_f32 {v(r,2)}, {v(r,2)}, {v(b,2)}, {v(b,2)} op_sel:[0,1,0] op_sel_hi:[1,1,0] neg_lo:[0,0,1] neg_hi:[0,0,1]")
p(f"v_lshlrev_b32 v12, 5, {vHF}")
p(f"v_add_u32 v12, {L_AS}, v12")
p("s_waitcnt lgkmcnt(0)")
p("s_barrier")
p("ds_read_b128 v[80:83], v12")
p("ds_read_b128 v[88:91], v12 offset:64")
p("ds_read_b128 v[84:87], v12 offset:16")
p("ds_read_b128 v[92:95], v12 offset:80")
p(f"s_lshl_b32 {sT[0]}, {sG}, 18")
p(f"s_lshl_b32 {sT[1]}, {sW}, 16")
p(f"s_add_u32 {sT[0]}, {sT[0]}, {sT[1]}")
p(f"s_lshl_b32 {sT[1]}, {sJ}, 10")
p(f"s_add_u32 {sT[0]}, {sT[0]}, {sT[1]}")
p(f"s_add_u32 {sT[0]}, {sT[0]}, {W_H}")
p(f"s_add_u32 {sT[1]}, {sT[0]}, 32768")
p("s_waitcnt lgkmcnt(0)")
stamp("gotMod")
for t in range(2):
    for e in range(4):
        r = 64 + 8 * t + 2 * e
        p(f"v_pk_fma_f32 {v(r,2)}, {v(r,2)}, {v(88+2*e,2)}, {v(80+2*e,2)}")
    for e in range(4):
        r = 64 + 8 * t + 2 * e
        p(f"v_cvt_pk_bf16_f32 v{vXS+4*t+e}, v{r}, v{r+1}")
    th = p(f"buffer_store_dwordx4 {v(vXS+4*t,4)}, {vL16}, {sWS}, {sT[t]} offen{SC}")
tq = wqkv_dma(p, 0, L_WQ)
p(f"s_lshl_b32 {sT[0]}, {sG}, 9")
p(f"s_lshl_b32 {sT[1]}, {sW}, 7")
p(f"s_add_u32 {sT[0]}, {sT[0]}, {sT[1]}")
p(f"s_lshl_b32 {sT[1]}, {sJ}, 2")
p(f"s_add_u32 {sT[0]}, {sT[0]}, {sT[1]}")
p(f"s_add_u32 {sT[0]}, {sT[0]}, {W_FH}")
publish_flag(p, sT[0], th)
stamp("pubH")
p(f"s_sub_u32 {sT[7]}, {sW}, 1")
p(f"s_cmp_lt_u32 {sT[7]}, 2")
p("s_cbranch_scc0 A_J4")
p.rb()
mod_gather(p, 0, 0)
p("v_add_f32 v13, 1.0, v12")
p("v_cvt_pk_bf16_f32 v13, v13, v13")
p(f"s_lshl_b32 {sT[0]}, {sT[7]}, 3")
p(f"v_cmp_gt_u32 vcc, {sT[0]}, {vD16}")
p("v_cndmask_b32 v12, v12, v13, vcc")
p(f"s_lshl_b32 {sT[0]}, {sG}, 12")
p(f"s_lshl_b32 {sT[1]}, {sT[7]}, 11")
p(f"s_add_u32 {sT[0]}, {sT[0]}, {sT[1]}")
p(f"s_lshl_b32 {sT[1]}, {sJ}, 5")
p(f"s_add_u32 {sT[0]}, {sT[0]}, {sT[1]}")
p(f"s_add_u32 {sT[0]}, {sT[0]}, {W_MODF}")
p("v_mov_b32 v13, v12")
p("v_permlane32_swap_b32 v13, v12")
p("v_lshrrev_b32 v13, 16, v13")
p("v_and_or_b32 v12, v12, v14, v13") if False else None
p("v_and_b32 v12, 0xffff0000, v12")
p("v_or_b32 v12, v12, v13")
p(f"v_lshrrev_b32 v13, 3, {vD16}")
p(f"v_and_b32 v14, 7, {vD16}")
p("v_lshlrev_b32 v13, 10, v13")
p("v_lshl_add_u32 v13, v14, 2, v13")
p("s_mov_b64 exec, 0xffff")
p(f"buffer_store_dword v12, v13, {sWS}, {sT[0]} offen{SC}")
p("s_mov_b64 exec, -1")
p.flush()
p.re_()
p.label("A_J4")

vH = 128
aK, aV, aQ, aP = 64, 80, 96, 112
vWF = 32
p(f"s_lshl_b32 {sT[0]}, {sRB}, 2")
p(f"s_add_u32 {sT[3]}, {sT[0]}, {sW}")
p(f"s_lshr_b32 {sT[0]}, {sT[3]}, 1")
p(f"s_lshl_b32 {sT[0]}, {sT[0]}, 7")
p(f"s_lshl_b32 {sT[1]}, {sG}, 9")
p(f"s_add_u32 {sT[0]}, {sT[0]}, {sT[1]}")
p(f"s_add_u32 {sT[0]}, {sT[0]}, {W_FH}")
p(f"v_lshlrev_b32 v12, 2, {vR32}")
poll(p, "v12", sT[0], "v13")
stamp("gotH")
p(f"s_lshl_b32 {sT[0]}, {sG}, 3")
p(f"s_add_u32 {sT[3]}, {sT[3]}, {sT[0]}")
p(f"s_lshl_b32 {sT[4]}, {sT[3]}, 15")
p(f"s_add_u32 {sT[0]}, {sT[4]}, {W_H}")
hl = []
for ks in range(32):
    hl.append(p(f"buffer_load_dwordx4 {v(vH+4*ks,4)}, {vL16}, {sWS}, {sT[0]} offen offset:{1024*(ks&3)} sc1"))
    if ks & 3 == 3 and ks < 31:
        p(f"s_add_u32 {sT[0]}, {sT[0]}, 4096")
p("s_barrier")
vPH = 20
p(f"v_bfe_u32 v12, {vL}, 2, 2")
p(f"v_lshl_add_u32 v12, {vHF}, 2, v12")
p(f"v_lshlrev_b32 v12, 5, v12")
p(f"v_bfe_u32 v13, {vL}, 1, 1")
p(f"v_and_b32 v14, 1, {vQ}")
p(f"v_lshl_add_u32 v13, v14, 1, v13")
p(f"v_lshl_add_u32 v12, v13, 3, v12")
p(f"v_add_u32 v12, {L_WPHI}, v12")
for hh in range(2):
    p(f"ds_read_b64_tr_b16 {v(vPH+4*hh,2)}, v12 offset:{512*hh}")
    tph = p(f"ds_read_b64_tr_b16 {v(vPH+4*hh+2,2)}, v12 offset:{512*hh+256}")
p(f"v_bfe_i32 v13, {vL}, 2, 1")
p(f"v_and_b32 v13, 0x80008000, v13")
p(f"v_add_u32 v14, {L_WQ}, {vTRN}")
p.wl(tph)
for r in range(8):
    p(f"v_xor_b32 v{vPH+r}, v13, v{vPH+r}")


def wread(q, slot, addr, off):
    r = vWF + 4 * slot
    q(f"ds_read_b64_tr_b16 {v(r,2)}, {addr} offset:{off}")
    return q(f"ds_read_b64_tr_b16 {v(r+2,2)}, {addr} offset:{off+256}")


NS = 6
seq = [(ks, t) for ks in range(32) for t in range(2)]
rd = {}
PRE = 4
for n in range(PRE):
    ks, t = seq[n]
    rd[n] = wread(p, n % NS, vTRV if t else vTRN, (L_WV if t else L_WK) + 1024 * ks)
for n, (ks, t) in enumerate(seq):
    if n + PRE < len(seq):
        k2, t2 = seq[n + PRE]
        rd[n + PRE] = wread(p, (n + PRE) % NS, vTRV if t2 else vTRN, (L_WV if t2 else L_WK) + 1024 * k2)
    if t == 0:
        p.wv(hl[ks])
    p.wl(rd[n])
    acc = aV if t else aK
    p(f"v_mfma_f32_32x32x16_bf16 {v(acc,16)}, {v(vWF+4*(n%NS),4)}, {v(vH+4*ks,4)}, {'0' if ks==0 else v(acc,16)}")
stamp("kvGemm")


def softmax(q, P, out):
    q(f"v_max3_f32 v12, v{P}, v{P+1}, v{P+2}")
    q(f"v_max3_f32 v13, v{P+3}, v{P+4}, v{P+5}")
    q(f"v_max3_f32 v12, v12, v{P+6}, v{P+7}")
    q(f"v_max3_f32 v13, v13, v{P+8}, v{P+9}")
    q(f"v_max3_f32 v12, v12, v{P+10}, v{P+11}")
    q(f"v_max3_f32 v13, v13, v{P+12}, v{P+13}")
    q(f"v_max3_f32 v12, v12, v{P+14}, v{P+15}")
    q(f"v_max_f32 v12, v12, v13")
    for n in range(8):
        r = P + 2 * n
        q(f"v_pk_add_f32 {v(r,2)}, {v(r,2)}, v[12:13] op_sel_hi:[1,0] neg_lo:[0,1] neg_hi:[0,1]")
    for n in range(8):
        r = P + 2 * n
        q(f"v_pk_mul_f32 {v(r,2)}, {v(r,2)}, s[64:65] op_sel:[0,1]")
    for n in range(16):
        q(f"v_exp_f32 v{P+n}, v{P+n}")
    q(f"v_pk_add_f32 v[12:13], {v(P,2)}, {v(P+2,2)}")
    q(f"v_pk_add_f32 v[16:17], {v(P+4,2)}, {v(P+6,2)}")
    q(f"v_pk_add_f32 v[12:13], v[12:13], {v(P+8,2)}")
    q(f"v_pk_add_f32 v[16:17], v[16:17], {v(P+10,2)}")
    q(f"v_pk_add_f32 v[12:13], v[12:13], {v(P+12,2)}")
    q(f"v_pk_add_f32 v[16:17], v[16:17], {v(P+14,2)}")
    q(f"v_pk_add_f32 v[12:13], v[12:13], v[16:17]")
    q(f"v_add_f32 v12, v12, v13")
    q(f"v_rcp_f32 v12, v12")
    for n in range(8):
        r = P + 2 * n
        q(f"v_pk_mul_f32 {v(r,2)}, {v(r,2)}, v[12:13] op_sel_hi:[1,0]")
    for n in range(8):
        q(f"v_cvt_pk_bf16_f32 v{out+n}, v{P+2*n}, v{P+2*n+1}")


def pack(q, src, dst, n):
    for e in range(n):
        q(f"v_cvt_pk_bf16_f32 v{dst+e}, v{src+2*e}, v{src+2*e+1}")


p(f"s_lshl_b32 {sT[0]}, {sW}, 10")
p(f"s_add_u32 {sT[0]}, {sT[0]}, {L_PL}")
p(f"v_lshl_add_u32 v15, {vR32}, 5, {sT[0]}")
p(f"v_lshl_add_u32 v15, {vHF}, 12, v15")
pack(p, aK, 32, 8)
p(f"v_mfma_f32_32x32x16_bf16 {v(aP,16)}, {v(vPH,4)}, v[32:35], 0")
p(f"v_mfma_f32_32x32x16_bf16 {v(aQ,16)}, {v(vPH+4,4)}, v[36:39], 0")
pack(p, aV, 40, 8)
p(f"ds_write_b128 v15, v[40:43] offset:16384")
p(f"ds_write_b128 v15, v[44:47] offset:16400")
softmax(p, aP, 32)
p(f"ds_write_b128 v15, v[32:35]")
p(f"ds_write_b128 v15, v[36:39] offset:16")
softmax(p, aQ, 48)
p(f"ds_write_b128 v15, v[48:51] offset:8192")
p(f"ds_write_b128 v15, v[52:55] offset:8208")
p(f"s_lshl_b32 {sT[0]}, {sW}, 12")
p(f"s_add_u32 {sT[0]}, {sT[0]}, {L_PL}")
p(f"v_lshl_add_u32 v12, {vL}, 3, {sT[0]}")
p(f"s_lshr_b32 {sT[0]}, {sW}, 1")
p(f"s_lshl_b32 {sT[0]}, {sT[0]}, 12")
p(f"s_add_u32 {sT[0]}, {sT[0]}, {L_PL+16384}")
p(f"v_lshl_add_u32 v13, {vL}, 3, {sT[0]}")
for r in range(4):
    p(f"v_mov_b32 v{16+r}, 0x3f803f80")
p("s_waitcnt lgkmcnt(0)")
p("s_barrier")
stamp("phiK")
tr = []
for s_ in range(4):
    p(f"ds_read_b64_tr_b16 {v(64+8*s_,2)}, v12 offset:{1024*s_}")
    p(f"ds_read_b64_tr_b16 {v(66+8*s_,2)}, v12 offset:{1024*s_+512}")
    p(f"ds_read_b64_tr_b16 {v(68+8*s_,2)}, v13 offset:{1024*s_}")
    tr.append(p(f"ds_read_b64_tr_b16 {v(70+8*s_,2)}, v13 offset:{1024*s_+512}"))
for s_ in range(4):
    p.wl(tr[s_])
    p(f"v_mfma_f32_16x16x32_bf16 v[112:115], {v(64+8*s_,4)}, {v(68+8*s_,4)}, {'0' if s_==0 else 'v[112:115]'}")
    p(f"v_mfma_f32_16x16x32_bf16 v[116:119], {v(64+8*s_,4)}, v[16:19], {'0' if s_==0 else 'v[116:119]'}")
p(f"s_lshl_b32 {sT[5]}, {sHP}, 2")
p(f"s_add_u32 {sT[5]}, {sT[5]}, {sW}")
p(f"s_lshl_b32 {sT[5]}, {sT[5]}, 4")
p(f"s_lshl_b32 {sT[6]}, {sG}, 1")
p(f"s_add_u32 {sT[6]}, {sT[6]}, {sRB}")
p(f"s_add_u32 {sT[2]}, {sT[5]}, {sT[6]}")
p(f"s_lshl_b32 {sT[0]}, {sT[2]}, 9")
p(f"s_add_u32 {sT[0]}, {sT[0]}, {W_KV}")
p(f"s_lshl_b32 {sT[1]}, {sT[2]}, 5")
p(f"s_add_u32 {sT[1]}, {sT[1]}, {W_Z}")
p(f"v_lshlrev_b32 v12, 3, {vQ}")
p(f"v_lshl_add_u32 v12, {vD16}, 5, v12")
pack(p, 112, 112, 2)
pack(p, 116, 116, 2)
p(f"buffer_store_dwordx2 v[112:113], v12, {sWS}, {sT[0]} offen sc1")
p("s_mov_b32 exec_lo, 0x00010001")
p("s_mov_b32 exec_hi, 0x00010001")
tkv = p(f"buffer_store_dwordx2 v[116:117], v12, {sWS}, {sT[1]} offen sc1")
p("s_mov_b64 exec, -1")
p(f"s_lshl_b32 {sT[0]}, {sHP}, 8")
p(f"s_lshl_b32 {sT[1]}, {sT[6]}, 4")
p(f"s_add_u32 {sT[0]}, {sT[0]}, {sT[1]}")
p(f"s_lshl_b32 {sT[1]}, {sW}, 2")
p(f"s_add_u32 {sT[0]}, {sT[0]}, {sT[1]}")
p(f"s_add_u32 {sT[7]}, {sT[0]}, {W_FKV}")
rd = {}
for n in range(PRE):
    rd[n] = wread(p, n % NS, "v14", 1024 * n)
for ks in range(32):
    if ks + PRE < 32:
        rd[ks + PRE] = wread(p, (ks + PRE) % NS, "v14", 1024 * (ks + PRE))
    p.wl(rd[ks])
    p(f"v_mfma_f32_32x32x16_bf16 {v(aQ,16)}, {v(vWF+4*(ks%NS),4)}, {v(vH+4*ks,4)}, {'0' if ks==0 else v(aQ,16)}")
    if ks == 23:
        p.wv(tkv)
        p("s_mov_b64 exec, 1")
        p(f"buffer_store_dword {vTAG}, off, {sWS}, {sT[7]} sc1")
        p("s_mov_b64 exec, -1")
        stamp("pubKV")
pack(p, aQ, 32, 8)
p(f"v_mfma_f32_32x32x16_bf16 {v(aP,16)}, {v(vPH,4)}, v[32:35], 0")
p(f"v_mfma_f32_32x32x16_bf16 {v(aK,16)}, {v(vPH+4,4)}, v[36:39], 0")
vFQ = 40
softmax(p, aP, vFQ)
softmax(p, aK, vFQ + 8)
stamp("phiQ")

vDS = 28
vDG, vDX = "v60", "v61"
for n in range(3):
    p(f"v_add_u32 v12, {64*n}, {vL}")
    p(f"v_mul_u32_u24 v13, 5462, v12")
    p(f"v_lshrrev_b32 v13, 16, v13")
    p(f"v_mul_u32_u24 v16, 12, v13")
    p(f"v_sub_u32 v12, v12, v16")
    p(f"v_lshrrev_b32 v16, 3, v13")
    p(f"v_lshlrev_b32 v16, 1, v16")
    p(f"v_xor_b32 v12, v12, v16")
    p(f"v_mul_u32_u24 v13, 2752, v13")
    p(f"v_lshl_add_u32 v{vDS+n}, v12, 4, v13")
p(f"v_and_b32 v12, 1, {vQ}")
p(f"v_bfe_u32 v13, {vL}, 2, 2")
p(f"v_lshl_add_u32 v13, v12, 3, v13")
p(f"v_mul_u32_u24 v13, 192, v13")
p(f"v_mul_u32_u24 v16, {2*DPART}, {vHF}")
p(f"v_add_u32 v13, v13, v16")
p(f"v_lshlrev_b32 v12, 5, v12")
p(f"s_lshr_b32 {sT[0]}, {sW}, 1")
p(f"s_mul_i32 {sT[0]}, {sT[0]}, 96")
p(f"s_and_b32 {sT[1]}, {sW}, 1")
p(f"s_lshl_b32 {sT[2]}, {sT[1]}, 6")
p(f"s_add_u32 {sT[2]}, {sT[2]}, {sT[0]}")
p(f"s_lshl_b32 {sT[1]}, {sT[1]}, 4")
p(f"s_add_u32 {sT[1]}, {sT[1]}, {sT[0]}")
p(f"s_add_u32 {sT[1]}, {sT[1]}, 32")
p(f"v_and_b32 v16, 1, {vL}")
p(f"v_bfe_u32 v17, {vL}, 1, 1")
p(f"v_lshl_add_u32 v18, v16, 1, v17")
p(f"v_lshl_add_u32 v18, v18, 3, {sT[2]}")
p(f"v_xor_b32 v18, v18, v12")
p(f"v_add_u32 {vDG}, v18, v13")
p(f"v_lshl_add_u32 v18, v16, 3, {sT[1]}")
p(f"v_xor_b32 v18, v18, v12")
p(f"v_mul_u32_u24 v17, {DPART}, v17")
p(f"v_add3_u32 {vDX}, v18, v13, v17")


def dstage_issue(q, chunks, lbase):
    q(f"s_lshr_b32 {sT[0]}, {sW}, 1")
    q(f"s_mul_i32 {sT[0]}, {sT[0]}, {16*2752}")
    q(f"s_mul_i32 {sT[1]}, {sHP}, 192")
    q(f"s_add_u32 {sT[0]}, {sT[0]}, {sT[1]}")
    q(f"s_add_u32 {sT[0]}, {sT[0]}, {chunks[0]*32*2752}")
    q(f"s_mul_i32 {sT[2]}, {sW}, {DPART}")
    q(f"s_add_u32 {sT[2]}, {sT[2]}, {lbase}")
    for ci, c in enumerate(chunks):
        for n in range(3):
            t = dma(q, v(vDS + n), sGU, sT[0], sT[2])
            q(f"s_add_u32 {sT[2]}, {sT[2]}, {1024 if n < 2 else DCH-2048}")
        q(f"s_add_u32 {sT[0]}, {sT[0]}, {32*2752}")
    return t


def dstage_read(q, chunks, lbase):
    for ci, c in enumerate(chunks):
        o = lbase + ci * DCH
        assert o + DPART + 768 < 65536
        for T, (ad, oo) in enumerate(((vDG, 0), (vDG, DPART), (vDX, 0))):
            r = 12 * c + 4 * T
            q(f"ds_read_b64_tr_b16 {a(r,2)}, {ad} offset:{o+oo}")
            q(f"ds_read_b64_tr_b16 {a(r+2,2)}, {ad} offset:{o+oo+768}")


for batch in ([0, 1, 2, 3], [4, 5, 6, 7], [8, 9, 10, 11], [12, 13, 14, 15]):
    p("s_waitcnt lgkmcnt(0)")
    p("s_barrier")
    dstage_issue(p, batch, 0)
    p("s_waitcnt vmcnt(0)")
    p("s_barrier")
    dstage_read(p, batch, 0)
p("s_waitcnt lgkmcnt(0)")
p("s_barrier")
stamp("dstage")
vA8 = "v62"
p(f"v_bfe_u32 v12, {vL}, 2, 3")
p(f"v_lshlrev_b32 v12, 10, v12")
p(f"v_lshl_add_u32 v12, {vHF}, 6, v12")
p(f"v_and_b32 v13, 3, {vL}")
p(f"v_lshl_add_u32 {vA8}, v13, 4, v12")
p(f"s_lshl_b32 {sT[0]}, {sW}, 17")
p(f"s_lshl_b32 {sT[1]}, {sCC}, 7")
p(f"s_add_u32 {sT[0]}, {sT[0]}, {sT[1]}")
p(f"s_lshl_b32 {sT[2]}, {sW}, 14")
p(f"s_add_u32 {sT[2]}, {sT[2]}, {L_WO}")
for n in range(16):
    dma(p, vA8, sWO, sT[0], sT[2])
    if n < 15:
        p(f"s_add_u32 {sT[0]}, {sT[0]}, 8192")
        p(f"s_add_u32 {sT[2]}, {sT[2]}, 1024")
vXT, vXO = 20, "v63"
sXO = "s3"
p(f"v_lshlrev_b32 v12, 10, {vR32}")
p(f"v_lshl_add_u32 {vXO}, {vHF}, 5, v12")
p(f"s_lshl_b32 {sT[0]}, {sG}, 18")
p(f"s_lshl_b32 {sT[1]}, {sCR}, 16")
p(f"s_add_u32 {sT[0]}, {sT[0]}, {sT[1]}")
p(f"s_lshr_b32 {sT[1]}, {sW}, 1")
p(f"s_lshl_b32 {sT[1]}, {sT[1]}, 15")
p(f"s_add_u32 {sT[0]}, {sT[0]}, {sT[1]}")
p(f"s_lshl_b32 {sT[1]}, {sCC}, 7")
p(f"s_add_u32 {sT[0]}, {sT[0]}, {sT[1]}")
p(f"s_and_b32 {sT[1]}, {sW}, 1")
p(f"s_lshl_b32 {sT[1]}, {sT[1]}, 6")
p(f"s_add_u32 {sXO}, {sT[0]}, {sT[1]}")
p(f"buffer_load_dwordx4 {v(vXT,4)}, {vXO}, {sX}, {sXO} offen")
p(f"buffer_load_dwordx4 {v(vXT+4,4)}, {vXO}, {sX}, {sXO} offen offset:16")

p(f"s_lshl_b32 {sT[0]}, {sHP}, 8")
p(f"s_add_u32 {sT[0]}, {sT[0]}, {W_FKV}")
poll(p, vL4, sT[0], "v13")
stamp("gotKV")
p(f"s_lshl_b32 {sT[0]}, {sT[5]}, 9")
p(f"s_add_u32 {sT[0]}, {sT[0]}, {W_KV}")
p(f"s_add_u32 {sT[1]}, {sT[0]}, 4096")
p(f"s_lshl_b32 {sT[2]}, {sT[5]}, 5")
p(f"s_add_u32 {sT[2]}, {sT[2]}, {W_Z}")
p(f"v_and_b32 v12, 1, {vQ}")
p(f"v_lshlrev_b32 v12, 4, v12")
p(f"v_lshl_add_u32 v13, {vHF}, 9, v12")
p(f"v_lshl_add_u32 v13, {vD16}, 5, v13")
p(f"v_lshl_add_u32 v12, {vHF}, 5, v12")
p(f"v_and_b32 v16, 7, {vL}")
p(f"v_lshl_add_u32 v12, v16, 6, v12")
tz = p(f"buffer_load_dwordx4 v[96:99], v12, {sWS}, {sT[2]} offen sc1")
kl = []
for P in range(8):
    kl.append(p(f"buffer_load_dwordx4 {v(64+4*P,4)}, v13, {sWS}, {sT[P>>2]} offen offset:{1024*(P&3)} sc1"))
p(f"s_mul_i32 {sT[0]}, {sW}, 576")
p(f"s_add_u32 {sT[0]}, {sT[0]}, {L_KVS}")
p(f"v_lshl_add_u32 v16, {vQ}, 3, {sT[0]}")
p(f"v_lshl_add_u32 v17, {vD16}, 5, v16")
p(f"v_bfe_u32 v12, {vL}, 2, 1")
p(f"v_bfe_u32 v13, {vL}, 3, 1")
p(f"v_and_b32 v18, 3, {vL}")
p(f"v_lshl_add_u32 v18, v12, 3, v18")
p(f"v_lshl_add_u32 v18, v13, 2, v18")
p(f"v_cmp_lt_u32 vcc, 15, {vR32}")
p(f"v_cndmask_b32 v18, v18, 16, vcc")
p(f"v_lshlrev_b32 v18, 5, v18")
p(f"v_mul_u32_u24 v12, 576, {vHF}")
p(f"v_add_u32 v12, {L_KVS}, v12")
p(f"v_add_u32 v18, v18, v12")
p.wv(tz)
p(f"v_mfma_f32_16x16x32_bf16 v[116:119], {v(vRT,4)}, v[96:99], 0")
for P in range(8):
    p.wv(kl[P])
    p(f"v_mfma_f32_16x16x32_bf16 v[112:115], {v(vRT,4)}, {v(64+4*P,4)}, {'0' if P==0 else 'v[112:115]'}")
    if P == 3:
        for sh in (1, 2, 4):
            for r in range(4):
                p(f"v_add_f32_dpp v{116+r}, v{116+r}, v{116+r} row_ror:{sh} row_mask:0xf bank_mask:0xf")
pack(p, 116, 116, 2)
p("ds_write_b64 v16, v[116:117] offset:512")
pack(p, 112, 112, 2)
p("ds_write_b64 v17, v[112:113]")
p("s_waitcnt lgkmcnt(0)")
p("s_barrier")
tr = []
for hh in range(2):
    for s_ in range(2):
        tr.append(p(f"ds_read_b128 {v(64+8*hh+4*s_,4)}, v18 offset:{1152*hh+16*s_}"))
for hh in range(2):
    for s_ in range(2):
        p.wl(tr[2 * hh + s_])
        acc = 96 + 16 * hh
        p(f"v_mfma_f32_32x32x16_bf16 {v(acc,16)}, {v(64+8*hh+4*s_,4)}, {v(vFQ+8*hh+4*s_,4)}, {'0' if s_==0 else v(acc,16)}")
p(f"s_lshl_b32 {sT[0]}, {sHP}, 11")
p(f"s_add_u32 {sT[0]}, {sT[0]}, {sT[4]}")
p(f"s_add_u32 {sT[0]}, {sT[0]}, {W_O}")
for hh in range(2):
    acc = 96 + 16 * hh
    p(f"v_add_f32 v{acc+8}, 0x358637bd, v{acc+8}")
    p(f"v_rcp_f32 v{acc+8}, v{acc+8}")
    for e in range(4):
        p(f"v_pk_mul_f32 {v(acc+2*e,2)}, {v(acc+2*e,2)}, {v(acc+8,2)} op_sel_hi:[1,0]")
    pack(p, acc, acc + 12, 4)
    to = p(f"buffer_store_dwordx4 {v(acc+12,4)}, {vL16}, {sWS}, {sT[0]} offen offset:{1024*hh}{SC}")
p(f"s_lshl_b32 {sT[0]}, {sT[3]}, 6")
p(f"s_lshl_b32 {sT[1]}, {sHP}, 2")
p(f"s_add_u32 {sT[0]}, {sT[0]}, {sT[1]}")
p(f"s_add_u32 {sT[0]}, {sT[0]}, {W_FO}")
publish_flag(p, sT[0], to)
stamp("pubO")

p(f"s_lshl_b32 {sT[3]}, {sG}, 2")
p(f"s_add_u32 {sT[3]}, {sT[3]}, {sCR}")
p(f"s_lshl_b32 {sT[0]}, {sT[3]}, 7")
p(f"s_add_u32 {sT[0]}, {sT[0]}, {W_FO}")
p(f"v_lshlrev_b32 v12, 2, {vR32}")
poll(p, "v12", sT[0], "v13")
stamp("gotO")
p(f"s_lshl_b32 {sT[0]}, {sG}, 12")
p(f"s_lshl_b32 {sT[1]}, {sW}, 10")
p(f"s_add_u32 {sT[0]}, {sT[0]}, {sT[1]}")
p(f"s_add_u32 {sT[0]}, {sT[0]}, {W_MODF}")
p(f"s_add_u32 {sT[1]}, {sT[1]}, {L_MODL}")
dma(p, vL16, sWS, sT[0], sT[1], " sc1")
p(f"s_lshr_b32 {sT[1]}, {sW}, 1")
p(f"s_lshl_b32 {sT[1]}, {sT[1]}, 15")
p(f"s_and_b32 {sT[2]}, {sW}, 1")
p(f"s_lshl_b32 {sT[2]}, {sT[2]}, 12")
p(f"s_add_u32 {sT[2]}, {sT[2]}, {sT[1]}")
p(f"s_lshl_b32 {sT[0]}, {sT[3]}, 16")
p(f"s_add_u32 {sT[0]}, {sT[0]}, {sT[2]}")
p(f"s_add_u32 {sT[0]}, {sT[0]}, {W_O}")
p(f"s_add_u32 {sT[2]}, {sT[2]}, {L_O}")
ol = []
for c in range(4):
    p(f"s_mov_b32 m0, {sT[2]}")
    for n in range(4):
        t = p(f"buffer_load_dwordx4 {vL16}, {sWS}, {sT[0]} offen offset:{1024*n} sc1 lds")
    ol.append(t)
    if c < 3:
        p(f"s_add_u32 {sT[0]}, {sT[0]}, 8192")
        p(f"s_add_u32 {sT[2]}, {sT[2]}, 8192")
p(f"s_cmp_eq_u32 s2, 0")
p("s_cbranch_scc0 C_NOEP")
p.rb()
p("s_mov_b64 exec, 1")
p(f"buffer_store_dword {vTAG}, off, {sWS}, 0 sc1")
p("s_mov_b64 exec, -1")
p.re_()
p.label("C_NOEP")
vTC = "v31"
p(f"s_and_b32 {sT[2]}, {sW}, 1")
p(f"s_lshl_b32 {sT[2]}, {sT[2]}, 9")
p(f"v_lshl_add_u32 {vTC}, {vHF}, 9, {vTRV}")
p(f"v_add_u32 {vTC}, {sT[2]}, {vTC}")
p(f"s_add_u32 {sT[1]}, {sT[1]}, {L_O}")
p(f"v_add_u32 v14, {sT[1]}, {vL16}")
vX1 = 64
vOF = 96
for c in range(4):
    p.wv(ol[c])
    p("s_barrier")
    rd = {}

    def cread(n):
        ks = 8 * c + n
        wread(p, ks % NS, vTC, L_WO + 2048 * ks)
        return p(f"ds_read_b128 {v(vOF+4*(ks%NS),4)}, v14 offset:{1024*ks}")
    for n in range(4):
        rd[n] = cread(n)
    for n in range(8):
        ks = 8 * c + n
        if n + 4 < 8:
            rd[n + 4] = cread(n + 4)
        p.wl(rd[n])
        p(f"v_mfma_f32_32x32x16_bf16 {v(vX1,16)}, {v(vWF+4*(ks%NS),4)}, {v(vOF+4*(ks%NS),4)}, {'0' if ks==0 else v(vX1,16)}")
stamp("cGemm")
vMV = "v59"
p(f"s_lshl_b32 {sT[0]}, {sCC}, 1")
p(f"s_and_b32 {sT[1]}, {sW}, 1")
p(f"s_add_u32 {sT[4]}, {sT[0]}, {sT[1]}")
p(f"s_lshl_b32 {sT[0]}, {sT[4]}, 6")
p(f"s_add_u32 {sT[0]}, {sT[0]}, {L_MODL}")
p(f"v_lshl_add_u32 {vMV}, {vHF}, 5, {sT[0]}")
p(f"ds_read_b128 v[32:35], {vMV}")
tg = p(f"ds_read_b128 v[36:39], {vMV} offset:16")
p(f"ds_read_b128 v[40:43], {vMV} offset:2048")
ta = p(f"ds_read_b128 v[44:47], {vMV} offset:2064")
for e in range(8):
    unpack(p, v(vXT + e), v(80 + 2 * e), v(81 + 2 * e))
p.wl(tg)
for e in range(8):
    unpack(p, v(32 + e), v(96 + 2 * e), v(97 + 2 * e))
p.wl(ta)
for e in range(8):
    unpack(p, v(40 + e), v(112 + 2 * e), v(113 + 2 * e))
for e in range(8):
    r = vX1 + 2 * e
    p(f"v_pk_fma_f32 {v(r,2)}, {v(r,2)}, {v(96+2*e,2)}, {v(80+2*e,2)}")
for e in range(8):
    p(f"v_pk_mul_f32 {v(112+2*e,2)}, {v(vX1+2*e,2)}, {v(112+2*e,2)}")
pack(p, 112, 32, 8)
p(f"s_lshr_b32 {sT[1]}, {sW}, 1")
p(f"s_lshl_b32 {sT[5]}, {sT[3]}, 1")
p(f"s_add_u32 {sT[5]}, {sT[5]}, {sT[1]}")
p(f"s_lshl_b32 {sT[0]}, {sT[5]}, 15")
p(f"s_lshl_b32 {sT[1]}, {sT[4]}, 10")
p(f"s_add_u32 {sT[0]}, {sT[0]}, {sT[1]}")
p(f"s_add_u32 {sT[0]}, {sT[0]}, {W_Y}")
p(f"v_and_b32 v12, 1, {vQ}")
p(f"v_lshlrev_b32 v12, 14, v12")
p(f"v_lshl_add_u32 v12, {vHF}, 9, v12")
p(f"v_lshl_add_u32 v12, {vD16}, 4, v12")
p(f"buffer_store_dwordx4 v[32:35], v12, {sWS}, {sT[0]} offen{SC}")
p(f"buffer_store_dwordx4 v[36:39], v12, {sWS}, {sT[0]} offen offset:256{SC}")
p(f"v_pk_add_f32 v[16:17], {v(vX1,2)}, {v(vX1+2,2)}")
p(f"v_pk_mul_f32 v[18:19], {v(vX1,2)}, {v(vX1,2)}")
for e in range(1, 8):
    r = vX1 + 2 * e
    if e > 1:
        p(f"v_pk_add_f32 v[16:17], v[16:17], {v(r,2)}")
    p(f"v_pk_fma_f32 v[18:19], {v(r,2)}, {v(r,2)}, v[18:19]")
p("v_add_f32 v16, v16, v17")
p("v_add_f32 v18, v18, v19")
p("v_permlane32_swap_b32 v16, v18")
p("v_add_f32 v16, v16, v18")
p(f"s_lshl_b32 {sT[0]}, {sT[5]}, 4")
p(f"s_add_u32 {sT[0]}, {sT[0]}, {sT[4]}")
p(f"s_lshl_b32 {sT[1]}, {sT[0]}, 8")
p(f"s_add_u32 {sT[1]}, {sT[1]}, {W_ST2}")
ty = p(f"buffer_store_dword v16, {vL4}, {sWS}, {sT[1]} offen{SC}")
p(f"s_lshl_b32 {sT[0]}, {sT[0]}, 2")
p(f"s_add_u32 {sT[0]}, {sT[0]}, {W_FY}")
publish_flag(p, sT[0], ty)
stamp("pubY")

vAE = 44
p(f"v_and_b32 v12, 1, {vL}")
p(f"v_lshlrev_b32 v12, 10, v12")
p(f"v_sub_u32 v12, {L_MODL+2048}, v12")
p(f"v_lshl_add_u32 v12, {vQ}, 4, v12")
rd = {}
for n in range(4):
    rd[n] = p(f"ds_read_b128 {v(vOF+4*(n%NS),4)}, v12 offset:{64*n}")
for ks in range(16):
    if ks + 4 < 16:
        rd[ks + 4] = p(f"ds_read_b128 {v(vOF+4*((ks+4)%NS),4)}, v12 offset:{64*(ks+4)}")
    p.wl(rd[ks])
    for T in range(3):
        acc = 80 + 4 * T
        p(f"v_mfma_f32_16x16x32_bf16 {v(acc,4)}, {v(vOF+4*(ks%NS),4)}, {a(12*ks+4*T,4)}, {'0' if ks==0 else v(acc,4)}")
p(f"v_cmp_gt_u32 vcc, 16, {vL}")
for T in range(3):
    u, t_ = 80 + 4 * T, 81 + 4 * T
    o = vAE + 4 * T
    p(f"v_cndmask_b32 v{u}, 0, v{u}, vcc")
    p(f"v_cndmask_b32 v{t_}, 0, v{t_}, vcc")
    p(f"v_cvt_pk_bf16_f32 v{o+1}, v{u}, v{t_}")
    unpack(p, v(o + 1), "v12", "v13")
    p(f"v_sub_f32 v{u}, v{u}, v12")
    p(f"v_sub_f32 v{t_}, v{t_}, v13")
    p(f"v_cvt_pk_bf16_f32 v{o}, v12, v{u}")
    p(f"v_cvt_pk_bf16_f32 v{o+2}, v{t_}, v13")
    p(f"v_mov_b32 v{o+3}, 0")
stamp("ut")

sPAR = "s3x"
def wd_reg(slot, ct):
    n = 8 * slot + 4 * ct
    return ("a", 192 + n) if n < 64 else ("v", 144 + n - 64)
def rg(rc, c, off=0):
    return (a if rc[0] == "a" else v)(rc[1] + off, c)


p("s_barrier")
vTE, vTE2 = "v57", "v58"
p(f"s_lshl_b32 {sT[6]}, {sW}, 15")
p(f"v_add_u32 {vTE}, {sT[6]}, {vTC}")
p(f"v_xor_b32 {vTE2}, 512, {vTE}")
p(f"s_and_b32 {sT[7]}, {sCR}, 1")
p(f"s_mul_i32 {sT[7]}, {sT[7]}, 6")
for half in range(2):
    p(f"s_mov_b32 {sT[2]}, {sT[6]}")
    for i_ in range(11):
        p(f"s_add_u32 {sT[0]}, {sKS[i_]}, {sT[7]}")
        p(f"s_lshl_b32 {sT[0]}, {sT[0]}, 14")
        p(f"s_lshl_b32 {sT[1]}, {sCC}, 7")
        p(f"s_add_u32 {sT[0]}, {sT[0]}, {sT[1]}")
        dma(p, vA8, sWD, sT[0], sT[2])
        p(f"s_add_u32 {sT[0]}, {sT[0]}, 8192")
        p(f"s_add_u32 {sT[2]}, {sT[2]}, 1024")
        dma(p, vA8, sWD, sT[0], sT[2])
        p(f"s_add_u32 {sT[2]}, {sT[2]}, 1024")
    p("s_waitcnt vmcnt(0)")
    for i_ in range(11):
        for ct in range(2):
            rc = wd_reg(11 * half + i_, ct)
            ad = vTE2 if ct else vTE
            p(f"ds_read_b64_tr_b16 {rg(rc,2)}, {ad} offset:{2048*i_}")
            p(f"ds_read_b64_tr_b16 {rg(rc,2,2)}, {ad} offset:{2048*i_+256}")
    p("s_waitcnt lgkmcnt(0)")
    p(f"s_sub_u32 {sT[7]}, 6, {sT[7]}")
p("s_barrier")
stamp("estage")

p(f"s_lshl_b32 {sT[4]}, {sG}, 1")
p(f"s_add_u32 {sT[4]}, {sT[4]}, {sRB}")
p(f"s_lshl_b32 {sT[0]}, {sT[4]}, 8")
p(f"s_add_u32 {sT[0]}, {sT[0]}, {W_FY}")
poll(p, vL4, sT[0], "v13")
stamp("gotY")
p(f"s_and_b32 {sT[5]}, {sHP}, 1")
p(f"s_lshl_b32 {sT[0]}, {sT[5]}, 1")
p(f"s_xor_b32 {sT[0]}, {sT[0]}, {sW}")
p(f"s_lshl_b32 {sT[1]}, {sT[4]}, 2")
p(f"s_add_u32 {sT[0]}, {sT[0]}, {sT[1]}")
p(f"s_lshl_b32 {sT[0]}, {sT[0]}, 12")
p(f"s_add_u32 {sT[0]}, {sT[0]}, {W_ST2}")
for n in range(4):
    tst = p(f"buffer_load_dwordx4 {v(96+4*n,4)}, {vL16}, {sWS}, {sT[0]} offen offset:{1024*n} sc1")
yl = []
p(f"s_lshl_b32 {sT[1]}, {sW}, 13")
p(f"s_lshl_b32 {sT[0]}, {sT[4]}, 17")
p(f"s_add_u32 {sT[0]}, {sT[0]}, {sT[1]}")
p(f"s_add_u32 {sT[0]}, {sT[0]}, {W_Y}")
p(f"s_lshl_b32 {sT[2]}, {sT[5]}, 16")
p(f"s_add_u32 {sT[0]}, {sT[0]}, {sT[2]}")
for pp in range(4):
    for h2 in range(2):
        p(f"s_mov_b32 m0, {sT[1]}")
        for n in range(4):
            t = p(f"buffer_load_dwordx4 {vL16}, {sWS}, {sT[0]} offen offset:{1024*n} sc1 lds")
        p(f"s_add_u32 {sT[0]}, {sT[0]}, {4096 if h2 == 0 else 32768-4096}")
        p(f"s_add_u32 {sT[1]}, {sT[1]}, {4096 if h2 == 0 else 32768-4096}")
    yl.append(t)
    if pp == 1:
        p(f"s_lshl_b32 {sT[2]}, {sT[5]}, 17")
        p(f"s_sub_u32 {sT[0]}, {sT[0]}, {sT[2]}")
p.wv(tst)
p("v_pk_add_f32 v[96:97], v[96:97], v[100:101]")
p("v_pk_add_f32 v[98:99], v[98:99], v[102:103]")
p("v_pk_add_f32 v[104:105], v[104:105], v[108:109]")
p("v_pk_add_f32 v[106:107], v[106:107], v[110:111]")
p("v_pk_add_f32 v[96:97], v[96:97], v[104:105]")
p("v_pk_add_f32 v[98:99], v[98:99], v[106:107]")
p("v_permlane32_swap_b32 v96, v98")
p("v_permlane32_swap_b32 v97, v99")
p("v_add_f32 v96, v96, v98")
p("v_add_f32 v97, v97, v99")
p("v_permlane16_swap_b32 v96, v97")
p("v_add_f32 v96, v96, v97")
p("v_mul_f32 v96, 0x3b000000, v96")
p("v_mov_b32_dpp v97, v96 row_ror:8 row_mask:0xf bank_mask:0xf")
p("v_fma_f32 v97, -v96, v96, v97")
p("v_max_f32 v97, 0, v97")
p("v_add_f32 v97, 0x3727c5ac, v97")
p("v_rsq_f32 v98, v97")
p("v_sub_f32 v96, 0, v96")
p("v_mul_f32 v97, v97, v98")
p("v_cvt_pk_bf16_f32 v100, v96, v96")
p("v_cvt_pk_bf16_f32 v104, v97, v97")
p("v_and_b32 v105, 0xffff0000, v100")
p("v_and_b32 v104, 0xffff0000, v104")
p("v_sub_f32 v96, v96, v105")
p("v_sub_f32 v97, v97, v104")
p("v_cvt_pk_bf16_f32 v101, v96, v104")
p("v_cvt_pk_bf16_f32 v102, v104, v97")
p("v_mov_b32 v103, 0")
p("v_mul_f32 v99, v98, v98")
C1 = -2.0 * 0.7978845608028654 * 1.4426950408889634
C3 = C1 * 0.044715
import struct
f2h = lambda x: "0x%08x" % struct.unpack("<I", struct.pack("<f", x))[0]
p(f"v_mul_f32 v104, {f2h(C1)}, v98")
p(f"v_mul_f32 v105, {f2h(C3)}, v98")
p("v_mul_f32 v105, v105, v99")
p(f"v_and_b32 v12, 7, {vL}")
p(f"v_lshl_add_u32 v12, v12, 2, {vQ}")
p(f"s_lshl_b32 {sT[0]}, {sW}, 5")
p(f"v_add_u32 v12, {sT[0]}, v12")
p(f"v_lshlrev_b32 v13, 4, v12")
p(f"v_add_u32 v13, {L_EXT}, v13")
p(f"v_lshlrev_b32 v16, 3, v12")
p(f"v_add_u32 v16, {L_KC}, v16")
p(f"v_lshlrev_b32 v17, 2, v12")
p(f"v_add_u32 v17, {L_RS2}, v17")
p("s_mov_b32 exec_lo, 0x00ff00ff")
p("s_mov_b32 exec_hi, 0x00ff00ff")
p("ds_write_b128 v13, v[100:103]")
p("ds_write_b64 v16, v[104:105]")
p("ds_write_b32 v17, v99")
p("s_mov_b64 exec, -1")
vYA, vYB, vEX, vKA, vKX, vS1, vS3 = "v20", "v21", "v22", "v23", "v24", "v25", "v26"
p(f"v_add_u32 {vYA}, {L_Y}, {vL16}")
p(f"v_add_u32 {vYB}, {L_Y+65536}, {vL16}")
p(f"v_lshlrev_b32 {vEX}, 4, {vD16}")
p(f"v_add_u32 {vEX}, {L_EXT}, {vEX}")
p(f"v_lshlrev_b32 {vKA}, 3, {vD16}")
p(f"v_add_u32 {vKA}, {L_KC}, {vKA}")
p(f"v_lshl_add_u32 {vKX}, {vHF}, 7, {vKA}")
p(f"v_lshlrev_b32 v12, 4, {vD16}")
p(f"v_lshl_add_u32 v12, {vHF}, 8, v12")
p(f"v_and_b32 v13, 1, {vQ}")
p(f"v_lshl_add_u32 {vS1}, v13, 9, v12")
p(f"v_mul_u32_u24 v13, {ACT_RT}, v13")
p(f"v_add_u32 {vS3}, v13, v12")
sA1, sA3, sFA = sT[0], sT[1], sT[2]
p(f"s_lshl_b32 {sT[6]}, {sT[4]}, 1")
p(f"s_add_u32 {sT[6]}, {sT[6]}, {sT[5]}")
p(f"s_mul_i32 {sA1}, {sT[6]}, {2*ACT_RT}")
p(f"s_mul_i32 {sA3}, {sHP}, 6144")
p(f"s_add_u32 {sA1}, {sA1}, {sA3}")
p(f"s_lshr_b32 {sA3}, {sW}, 1")
p(f"s_mul_i32 {sA3}, {sA3}, 3072")
p(f"s_add_u32 {sA1}, {sA1}, {sA3}")
p(f"s_add_u32 {sA1}, {sA1}, {W_ACT}")
p(f"s_and_b32 {sFA}, {sW}, 1")
p(f"s_lshl_b32 {sA3}, {sFA}, 9")
p(f"s_add_u32 {sA3}, {sA3}, {sA1}")
p(f"s_add_u32 {sA3}, {sA3}, 1024")
p(f"s_lshl_b32 {sFA}, {sFA}, 11")
p(f"s_add_u32 {sA1}, {sA1}, {sFA}")
p(f"s_lshl_b32 {sFA}, {sT[6]}, 8")
p(f"s_lshl_b32 {sT[6]}, {sHP}, 4")
p(f"s_add_u32 {sFA}, {sFA}, {sT[6]}")
p(f"s_lshl_b32 {sT[6]}, {sW}, 2")
p(f"s_add_u32 {sFA}, {sFA}, {sT[6]}")
p(f"s_add_u32 {sFA}, {sFA}, {W_FACT}")
p(f"s_lshl_b32 {sT[6]}, {sT[5]}, 1")
p(f"s_sub_u32 {sT[6]}, 1, {sT[6]}")
p(f"s_mul_i32 {sT[7]}, {sT[6]}, {2*ACT_RT}")
p(f"s_lshl_b32 {sT[6]}, {sT[6]}, 8")
p("s_waitcnt lgkmcnt(0)")

vYF = 96
vACC = [80, 120]
def accreg(setn, tile, T):
    tab = [[80, 84, 88, 92, 32, 36], [120, 124, 128, 132, 136, 140]]
    return tab[setn][3 * tile + T]
vKC = 12
vP1 = 40
vP3 = 28
vE = [18, 19, 27, 56]


def gelu_mul(q, g, u, kc, out):
    for e in range(4):
        q(f"v_mul_f32 v{vE[e]}, v{g+e}, v{g+e}")
    for e in range(4):
        q(f"v_fma_f32 v{vE[e]}, v{vE[e]}, v{kc+1}, v{kc}")
    for e in range(4):
        q(f"v_mul_f32 v{vE[e]}, v{vE[e]}, v{g+e}")
    for e in range(4):
        q(f"v_exp_f32 v{vE[e]}, v{vE[e]}")
        q(f"v_mul_f32 v{u+e}, v{g+e}, v{u+e}")
    for e in range(4):
        q(f"v_add_f32 v{vE[e]}, 1.0, v{vE[e]}")
    for e in range(4):
        q(f"v_rcp_f32 v{vE[e]}, v{vE[e]}")
    for e in range(4):
        q(f"v_mul_f32 v{u+e}, v{u+e}, v{vE[e]}")
    q(f"v_cvt_pk_bf16_f32 v{out}, v{u}, v{u+1}")
    q(f"v_cvt_pk_bf16_f32 v{out+1}, v{u+2}, v{u+3}")


def d_main(pp):
    q = Prog()
    q.wv(yl[pp])
    q("s_barrier")
    steps = [(tile, ks) for tile in range(2) for ks in range(17)]
    rd = {}

    def yread(n):
        tile, ks = steps[n]
        rt = 2 * pp + tile
        r = v(vYF + 4 * (n % NS), 4)
        if ks == 16:
            return q(f"ds_read_b128 {r}, {vEX} offset:{256*rt}")
        return q(f"ds_read_b128 {r}, {vYB if rt >= 4 else vYA} offset:{16384*(rt&3)+1024*ks}")
    for n in range(4):
        rd[n] = yread(n)
    for n, (tile, ks) in enumerate(steps):
        if n + 4 < len(steps):
            rd[n + 4] = yread(n + 4)
        q.wl(rd[n])
        for T in range(3):
            acc = accreg(pp & 1, tile, T)
            w_ = v(vAE + 4 * T, 4) if ks == 16 else a(12 * ks + 4 * T, 4)
            q(f"v_mfma_f32_16x16x32_bf16 {v(acc,4)}, {w_}, {v(vYF+4*(n%NS),4)}, {'0' if ks==0 else v(acc,4)}")
    return q


def d_epi(pp):
    q = Prog()
    A = lambda tile, T: accreg(pp & 1, tile, T)
    q(f"ds_read_b64 {v(vKC,2)}, {vKA} offset:{256*pp}")
    q(f"ds_read_b64 {v(vKC+2,2)}, {vKA} offset:{256*pp+128}")
    t = q(f"ds_read_b64 {v(vKC+4,2)}, {vKX} offset:{256*pp}")
    for e in range(4):
        q(f"v_permlane32_swap_b32 v{A(0,2)+e}, v{A(1,2)+e}")
    q.wl(t)
    gelu_mul(q, A(0, 0), A(0, 1), vKC, vP1)
    gelu_mul(q, A(1, 0), A(1, 1), vKC + 2, vP1 + 2)
    q(f"v_permlane32_swap_b32 v{vP1}, v{vP1+2}")
    q(f"v_permlane32_swap_b32 v{vP1+1}, v{vP1+3}")
    q(f"buffer_store_dwordx4 {v(vP1,4)}, {vS1}, {sWS}, {sA1} offen{SC}")
    q(f"s_add_u32 {sA1}, {sA1}, {ACT_RT}" if pp & 1 == 0 else f"s_sub_u32 {sA1}, {sA1}, {ACT_RT}")
    gelu_mul(q, A(0, 2), A(1, 2), vKC + 4, vP3 + 2 * (pp & 1))
    st = None
    if pp & 1:
        q(f"v_permlane16_swap_b32 v{vP3}, v{vP3+2}")
        q(f"v_permlane16_swap_b32 v{vP3+1}, v{vP3+3}")
        st = q(f"buffer_store_dwordx4 {v(vP3,4)}, {vS3}, {sWS}, {sA3} offen{SC}")
        q(f"s_add_u32 {sA1}, {sA1}, {sT[7]}")
        q(f"s_add_u32 {sA3}, {sA3}, {sT[7]}")
    return q, st


p.ext(d_main(0))
stamp("d0")
for pp in range(1, 4):
    ep, st = d_epi(pp - 1)
    if pp == 3:
        f = Prog()
        publish_flag(f, sFA, st1)
        f(f"s_add_u32 {sFA}, {sFA}, {sT[6]}")
        ep.L = ep.L[:40] + [f.L] + ep.L[40:]
    if st is not None:
        st1 = st
    p.ext(merge(d_main(pp), ep, per=1.6, start=3))
stamp("dMain")
ep, st = d_epi(3)
p.ext(ep)
publish_flag(p, sFA, st)
stamp("pubAct")

vEA = 80
def eacc(rel):
    return v(vEA, 16) if rel == 0 else a(16 * (rel - 1), 16)
NF = 32
p(f"s_lshl_b32 {sT[4]}, {sT[3]}, 8")
p(f"s_add_u32 {sT[4]}, {sT[4]}, {W_FACT}")
p(f"s_mul_i32 {sT[5]}, {sT[3]}, {2*ACT_RT}")
p(f"s_add_u32 {sT[5]}, {sT[5]}, {W_ACT}")
p(f"s_lshr_b32 {sT[0]}, {sW}, 1")
p(f"s_mul_i32 {sT[0]}, {sT[0]}, {ACT_RT}")
p(f"v_add_u32 v20, {sT[0]}, {vL16}")
p(f"s_sub_u32 {sT[0]}, {ACT_RT}, {sT[0]}")
p(f"v_add_u32 v21, {sT[0]}, {vL16}")
p(f"s_and_b32 {sT[7]}, {sCR}, 1")
p(f"v_bfe_u32 v12, {vL}, 2, 3")
p(f"v_lshlrev_b32 v12, 5, v12")
p(f"v_and_b32 v13, 3, {vL}")
p(f"v_lshl_add_u32 v12, v13, 2, v12")
p(f"s_lshl_b32 {sT[0]}, {sT[7]}, 4")
p(f"v_add_u32 v22, {sT[0]}, v12")
p(f"v_xor_b32 v23, 16, v22")
p(f"s_mul_i32 {sT[7]}, {sT[7]}, 6")
for half in range(2):
    poll(p, "v23" if half else "v22", sT[4], "v13")
    stamp(f"gotAct{half}")
    al = []
    for i_ in range(11):
        p(f"s_add_u32 {sT[0]}, {sKS[i_]}, {sT[7]}")
        p(f"s_lshl_b32 {sT[0]}, {sT[0]}, 10")
        p(f"s_add_u32 {sT[0]}, {sT[0]}, {sT[5]}")
        for rt in range(2):
            al.append(p(f"buffer_load_dwordx4 {a(64+4*(2*i_+rt),4)}, {'v21' if rt else 'v20'}, {sWS}, {sT[0]} offen sc1"))
    for i_ in range(11):
        for rt in range(2):
            p.wv(al[2 * i_ + rt])
            for ct in range(2):
                rel = 2 * rt + ct
                first = half == 0 and i_ == 0
                p(f"v_mfma_f32_32x32x16_bf16 {eacc(rel)}, {rg(wd_reg(11*half+i_,ct),4)}, {a(64+4*(2*i_+rt),4)}, {'0' if first else eacc(rel)}")
    p(f"s_sub_u32 {sT[7]}, 6, {sT[7]}")
stamp("eGemm")
p("s_barrier")
for rel in range(1, 4):
    p(f"s_xor_b32 {sT[0]}, {sW}, {rel}")
    p(f"s_mul_i32 {sT[0]}, {sT[0]}, 12288")
    p(f"v_add_u32 v{12+rel}, {sT[0]}, {vL16}")
for rel in range(1, 4):
    for n in range(4):
        p(f"ds_write_b128 v{12+rel}, {a(16*(rel-1)+4*n,4)} offset:{4096*(rel-1)+1024*n}")
p(f"s_mul_i32 {sT[0]}, {sW}, 12288")
p(f"v_add_u32 v12, {sT[0]}, {vL16}")
p(f"s_xor_b32 {sT[0]}, {sCR}, {sHP}")
p(f"s_and_b32 {sT[0]}, {sT[0]}, 1")
p(f"s_lshl_b32 {sT[0]}, {sT[0]}, 8")
p(f"s_lshr_b32 {sT[1]}, {sW}, 1")
p(f"s_lshl_b32 {sT[1]}, {sT[1]}, 7")
p(f"s_add_u32 {sT[0]}, {sT[0]}, {sT[1]}")
p(f"s_add_u32 {sT[0]}, {sT[0]}, {L_RS2}")
p(f"v_lshl_add_u32 v16, {vR32}, 2, {sT[0]}")
p("ds_read_b32 v16, v16")
p(f"ds_read_b128 v[32:35], {vMV} offset:3072")
p(f"ds_read_b128 v[36:39], {vMV} offset:3088")
p("s_waitcnt lgkmcnt(0)")
p("s_barrier")
rr = []
for rel in range(1, 4):
    for n in range(4):
        rr.append(p(f"ds_read_b128 {v(96+16*(rel-1)+4*n,4)}, v12 offset:{4096*(rel-1)+1024*n}"))
for e in range(8):
    unpack(p, v(32 + e), v(40 + 2 * e), v(41 + 2 * e))
for e in range(8):
    p(f"v_pk_mul_f32 {v(40+2*e,2)}, {v(40+2*e,2)}, v[16:17] op_sel_hi:[1,0]")
for rel in range(1, 4):
    for n in range(4):
        p.wl(rr[4 * (rel - 1) + n])
        for e in range(2):
            r = vEA + 4 * n + 2 * e
            p(f"v_pk_add_f32 {v(r,2)}, {v(r,2)}, {v(96+16*(rel-1)+4*n+2*e,2)}")
for e in range(8):
    r = vEA + 2 * e
    p(f"v_pk_fma_f32 {v(r,2)}, {v(r,2)}, {v(40+2*e,2)}, {v(vX1+2*e,2)}")
pack(p, vEA, 32, 8)
p(f"buffer_store_dwordx4 v[32:35], {vXO}, {sOUT}, {sXO} offen")
p(f"buffer_store_dwordx4 v[36:39], {vXO}, {sOUT}, {sXO} offen offset:16")
if STAMPS:
    p("s_waitcnt vmcnt(0)")
    stamp("end")
    p("s_memrealtime s[56:57]")
    p("s_waitcnt lgkmcnt(0)")
    p("v_mov_b32 v12, 0")
    p("v_writelane_b32 v12, s56, 30")
    for i_ in range(nstamp[0] + 1):
        p(f"v_writelane_b32 v12, s{SSTAMP0+2*i_}, {i_}")
    p(f"v_writelane_b32 v12, {sXCC}, 31")
    p(f"s_lshl_b32 {sT[0]}, s2, 10")
    p(f"s_add_u32 {sT[0]}, {sT[0]}, {W_STAMP}")
    p(f"v_lshlrev_b32 v13, 2, v0")
    p(f"buffer_store_dword v12, v13, {sWS}, {sT[0]} offen")
p.label("END")
p("s_endpgm")

body = p.finish()
ref = open(f"cdna_kernels/{NAME}.s.ref").read().split("\n")
head = []
for ln in ref:
    if ln.startswith("; @launch"):
        head.append("; @launch grid=(256,1,1) block=(256,1,1) lds=163840")
        continue
    head.append(ln)
    if ln.startswith(NAME + "_kernel:"):
        break
tail = f"""
.section .rodata,"a"
.p2align 6
.amdhsa_kernel {NAME}_kernel
  .amdhsa_next_free_vgpr 512
  .amdhsa_next_free_sgpr 102
  .amdhsa_accum_offset 256
  .amdhsa_group_segment_fixed_size 0
  .amdhsa_kernarg_size 104
  .amdhsa_user_sgpr_count 2
  .amdhsa_user_sgpr_kernarg_segment_ptr 1
  .amdhsa_system_sgpr_workgroup_id_x 1
.end_amdhsa_kernel
"""
open(OUTF, "w").write("\n".join(head) + "\n" + body + tail)
if STAMPS:
    open(OUTF + ".names", "w").write(",".join(stamp_names))
print("written", OUTF, "lines", body.count("\n"), "nops", p.nnops, "stamps", stamp_names)
```

```python
import re

TRANS = ("v_exp_f32", "v_log_f32", "v_rcp_f32", "v_rsq_f32", "v_sqrt_f32", "v_sin_f32", "v_cos_f32")


class I:
    __slots__ = ("t", "kind", "tok", "region", "cmt", "lds")

    def __init__(s, t, kind="i", tok=None):
        s.t = t
        s.kind = kind
        s.tok = tok
        s.region = None
        s.lds = None

    def L(s, m, lo, n, tag, priv=None):
        s.lds = (m, lo, lo + n, tag, priv)
        return s


def regs(op):
    op = op.strip()
    op = op.replace("abs(", "").replace(")", "").lstrip("-").replace("|", "")
    m = re.fullmatch(r"([vas])(\d+)", op)
    if m:
        return {(m.group(1), int(m.group(2)))}
    m = re.fullmatch(r"([vas])\[(\d+):(\d+)\]", op)
    if m:
        return {(m.group(1), k) for k in range(int(m.group(2)), int(m.group(3)) + 1)}
    if op in ("vcc", "vcc_lo", "vcc_hi"):
        return {("s", "vcc")}
    if op in ("exec", "exec_lo", "exec_hi"):
        return {("s", "exec")}
    if op == "m0":
        return {("s", "m0")}
    return set()


def split_ops(rest):
    out, depth, cur = [], 0, ""
    for ch in rest:
        if ch in "[(":
            depth += 1
        if ch in "])":
            depth -= 1
        if ch == "," and depth == 0:
            out.append(cur.strip())
            cur = ""
        else:
            cur += ch
    if cur.strip():
        out.append(cur.strip())
    return out


class D:
    def __init__(s, text):
        text = text.split(";")[0].strip()
        parts = text.split(None, 1)
        s.mn = mn = parts[0]
        ops = split_ops(parts[1]) if len(parts) > 1 else []
        mods = ""
        if ops:
            last = ops[-1].split(None, 1)
            if len(last) > 1 and not ops[-1].startswith("hwreg"):
                ops[-1] = last[0]
                mods = last[1]
        s.mods = mods
        s.ops = ops
        s.dst, s.src = set(), set()
        s.cls = "other"
        s.passes = 0
        s.srcc = set()
        s.srcab = set()
        s.wide_store = set()
        R = [regs(o) for o in ops]
        if mn.startswith("v_mfma"):
            s.cls = "mfma"
            s.passes = 8 if "32x32" in mn else 4
            s.dst = R[0]
            s.srcab = R[1] | R[2]
            s.srcc = R[3]
            s.src = s.srcab | s.srcc
        elif mn.startswith("v_"):
            s.cls = "valu"
            if mn.startswith("v_cmp"):
                s.dst = R[0]
                s.src = set().union(*R[1:])
            elif mn.startswith("v_permlane") and "swap" in mn:
                s.dst = R[0] | R[1]
                s.src = R[0] | R[1]
            elif mn.startswith(("v_add_co", "v_sub_co", "v_addc_co", "v_subb_co")):
                s.dst = R[0] | R[1]
                s.src = set().union(*R[2:])
            elif mn == "v_nop":
                pass
            else:
                s.dst = R[0]
                s.src = set().union(*R[1:]) if len(R) > 1 else set()
                if mn.startswith(("v_fmac", "v_dot2c", "v_writelane")) or "_dpp" in mn:
                    s.src |= R[0]
        elif mn.startswith(("buffer_", "global_")):
            s.cls = "vmem"
            s.lds = "lds" in mods.split() or "_lds_" in mn
            if "load" in mn and not s.lds:
                s.dst = R[0]
                s.src = set().union(*R[1:])
            else:
                s.src = set().union(*R)
                if "store" in mn and ("x4" in mn or "x3" in mn):
                    s.wide_store = R[0] if mn.startswith("buffer_") else R[1]
        elif mn.startswith("ds_"):
            s.cls = "ds"
            if mn.startswith(("ds_read", "ds_bpermute", "ds_permute", "ds_swizzle")):
                s.dst = R[0]
                s.src = set().union(*R[1:])
            else:
                s.src = set().union(*R)
        elif mn.startswith(("s_load", "s_memtime", "s_memrealtime", "s_buffer_load")):
            s.cls = "smem"
            s.dst = R[0]
            s.src = set().union(*R[1:]) if len(R) > 1 else set()
        elif mn.startswith("s_"):
            s.cls = "salu"
            if mn.startswith(("s_cmp", "s_cbranch", "s_branch", "s_waitcnt", "s_nop", "s_barrier", "s_sleep", "s_endpgm", "s_setprio", "s_bitcmp")):
                s.src = set().union(*R) if R else set()
            else:
                s.dst = R[0] if R else set()
                s.src = set().union(*R[1:]) if len(R) > 1 else set()
                if "saveexec" in mn:
                    s.dst |= {("s", "exec")}
        s.states = 1
        if mn == "s_nop":
            s.states = int(ops[0], 0) + 1


def need(p, c):
    n = 0
    vec = lambda S: {r for r in S if r[0] in "va"}
    sca = lambda S: {r for r in S if r[0] == "s"}
    if p.cls == "valu":
        pv, ps = vec(p.dst), sca(p.dst)
        dot = p.mn.startswith("v_dot")
        if c.cls == "mfma" and pv & c.src:
            n = max(n, 3 if dot else 2)
        if c.cls == "valu":
            if pv & c.src or (dot and pv & c.dst):
                if p.mn.startswith(TRANS) and not c.mn.startswith(TRANS):
                    n = max(n, 1)
                if c.mn.startswith(("v_readlane", "v_readfirstlane")):
                    n = max(n, 1)
                if "_dpp" in c.mn or c.mn.startswith("v_permlane"):
                    n = max(n, 2)
                if dot:
                    same_c = c.mn == p.mn and not (pv & (regs(c.ops[1]) | regs(c.ops[2])))
                    if not same_c:
                        n = max(n, 3)
            if ps & c.src:
                n = max(n, 4 if c.mn.startswith(("v_readlane", "v_writelane")) else 2)
        if c.cls in ("vmem", "ds") and dot and pv & c.src:
            n = max(n, 3)
        if c.cls in ("vmem", "ds") and p.mn.startswith(TRANS) and pv & c.src:
            n = max(n, 1)
        if c.cls == "vmem" and ps & c.src:
            n = max(n, 5)
        if c.cls in ("salu", "smem") and ps & c.src:
            n = max(n, 1)
    if p.cls == "mfma":
        big = p.passes == 8
        if c.cls == "mfma":
            if p.dst & c.srcab:
                n = max(n, 12 if big else 8)
            if p.dst & c.srcc and not (p.dst == c.srcc and p.passes == c.passes):
                n = max(n, 10 if big else 6)
            if p.dst & c.dst and not (p.dst & c.srcc):
                n = max(n, 10 if big else 6)
        elif c.cls in ("valu", "vmem", "ds"):
            if p.dst & (c.src | c.dst):
                n = max(n, 12 if big else 8)
            if c.cls == "valu" and p.srcc & c.dst:
                n = max(n, 7 if big else 3)
    if p.cls == "salu" and ("s", "m0") in p.dst and c.cls == "vmem" and getattr(c, "lds", False):
        n = max(n, 1)
    if p.cls == "vmem" and p.wide_store & c.dst:
        n = max(n, 2)
    return n


def lds_check(L, dec):
    import bisect
    done, pend, bars = {}, {"vmem": [], "ds": []}, []
    for k, i in enumerate(L):
        if i.kind != "i":
            continue
        d = dec[id(i)]
        if d.cls in pend:
            pend[d.cls].append(i)
        if d.mn == "s_barrier" and not i.region:
            bars.append(k)
        if d.mn == "s_waitcnt":
            for cls, nm in (("vmem", "vmcnt"), ("ds", "lgkmcnt")):
                m = re.search(nm + r"\((\d+)\)", i.t)
                if not m:
                    continue
                n, keep = int(m.group(1)), []
                for o in reversed(pend[cls]):
                    sure = o.region == i.region[:len(o.region)]
                    if n > 0 or (i.region and o.region != i.region):
                        keep.append(o)
                        if sure and n > 0:
                            n -= 1
                    else:
                        done[id(o)] = k
                pend[cls] = keep[::-1]
    A = [(k, i) for k, i in enumerate(L) if i.kind == "i" and i.lds]
    una = [i.t for i in L if i.kind == "i" and not i.lds and (dec[id(i)].cls == "ds" or getattr(dec[id(i)], "lds", False))]
    bad = set()
    for y, (kb, b) in enumerate(A):
        for ka, a in A[:y]:
            x, z = a.lds, b.lds
            if x[0] == "r" and z[0] == "r" or x[2] <= z[1] or z[2] <= x[1]:
                continue
            if x[0] == "w" and z[0] == "w" and x[3] == z[3]:
                continue
            da = done.get(id(a), 1 << 30)
            if x[4] and z[4] and x[4][0] == z[4][0]:
                if x[4][1] + x[4][2] <= z[4][1] or z[4][1] + z[4][2] <= x[4][1]:
                    continue
                ok = da < kb or (dec[id(a)].cls == "ds" and dec[id(b)].cls == "ds")
            else:
                j = bisect.bisect_right(bars, da)
                ok = j < len(bars) and bars[j] < kb
            if not ok:
                bad.add((x[0], x[3], z[0], z[3]))
    for y, (kb, b) in enumerate(A):
        z = b.lds
        if z[0] == "r":
            for ka, a in reversed(A[:y]):
                x = a.lds
                if x[0] == "w" and x[1] < z[2] and z[1] < x[2]:
                    if x[4] and z[4] and x[4][0] == z[4][0] and (x[4][1] + x[4][2] <= z[4][1] or z[4][1] + z[4][2] <= x[4][1]):
                        continue
                    if x[3] != z[3]:
                        bad.add(("gen", x[3], "r", z[3]))
                    break
    if A:
        lds_check.una = una
        assert not bad, ("LDS hazards", sorted(bad))


class Prog:
    def __init__(s):
        s.L = []
        s.ntok = 0
        s.nlab = 0

    def e(s, t):
        i = I(t)
        s.L.append(i)
        return i

    def __call__(s, t):
        return s.e(t)

    def label(s, name):
        s.L.append(I(name, "l"))

    def newlabel(s, p="L"):
        Prog.cnt = getattr(Prog, "cnt", 0) + 1
        return f"{p}_{Prog.cnt}"

    def wv(s, tok):
        s.L.append(I("", "wv", tok))

    def wl(s, tok):
        s.L.append(I("", "wl", tok))

    def flush(s):
        s.L.append(I("", "flush"))

    def raw(s, t):
        s.L.append(I(t, "raw"))

    def rb(s):
        s.L.append(I("", "rb"))

    def re_(s):
        s.L.append(I("", "re"))

    def ext(s, other):
        s.L.extend(other.L if isinstance(other, Prog) else other)

    def finish(s):
        stack, nreg = [], 0
        for i in s.L:
            if i.kind == "rb":
                nreg += 1
                stack.append(nreg)
            elif i.kind == "re":
                stack.pop()
            i.region = tuple(stack)
        dec = {}
        for i in s.L:
            if i.kind == "i":
                dec[id(i)] = D(i.t)
        pos = {id(i): k for k, i in enumerate(s.L)}
        for k, i in enumerate(s.L):
            if i.kind in ("wv", "wl"):
                toks = i.tok if isinstance(i.tok, (list, tuple)) else [i.tok]
                p = max(pos[id(t)] for t in toks)
                assert p < k, "wait before its op"
                cls = "vmem" if i.kind == "wv" else "ds"
                for t in toks:
                    assert dec[id(t)].cls == cls, (t.t, cls)
                n = 0
                for j in s.L[p + 1:k]:
                    if j.kind == "i" and dec[id(j)].cls == cls and j.region == i.region[:len(j.region)]:
                        n += 1
                if cls == "vmem":
                    n = min(n, 63)
                    i.t = f"s_waitcnt vmcnt({n})"
                else:
                    n = min(n, 15)
                    i.t = f"s_waitcnt lgkmcnt({n})"
                i.kind = "i"
                dec[id(i)] = D(i.t)
        lds_check(s.L, dec)
        out = []
        hist = []
        nn = 0
        for i in s.L:
            if i.kind == "l":
                out.append(i.t + ":")
                continue
            if i.kind == "raw":
                out.append(i.t)
                continue
            if i.kind in ("rb", "re"):
                continue
            if i.kind == "flush":
                req = 0
                for (p, dist) in hist:
                    full = 0
                    if p.cls == "mfma":
                        full = 12 if p.passes == 8 else 8
                    elif p.cls == "valu":
                        full = 5 if any(r[0] == "s" for r in p.dst) else 3 if p.mn.startswith("v_dot") else 2
                    elif p.cls == "vmem" and p.wide_store:
                        full = 2
                    elif p.cls == "salu" and ("s", "m0") in p.dst:
                        full = 1
                    req = max(req, full - dist)
                if req > 0:
                    out.append(f"    s_nop {req-1}")
                    nn += 1
                hist = []
                continue
            d = dec[id(i)]
            req = 0
            for (p, dist) in hist:
                req = max(req, need(p, d) - dist)
            if req > 0:
                out.append(f"    s_nop {req-1}")
                nn += 1
                hist = [(p, dist + req) for (p, dist) in hist]
            out.append("    " + i.t)
            hist = [(p, dist + d.states) for (p, dist) in hist if dist + d.states < 13]
            hist.append((d, 0))
        s.nnops = nn
        return "\n".join(out)


def merge(main, fill, every=1, per=1, start=0, is_anchor=None):
    main = main.L if isinstance(main, Prog) else main
    fill = list(fill.L if isinstance(fill, Prog) else fill)
    if is_anchor is None:
        is_anchor = lambda i: i.kind == "i" and i.t.startswith("v_mfma")
    out, k, cnt, acc = [], 0, 0, 0.0
    for i in main:
        out.append(i)
        if is_anchor(i):
            cnt += 1
            if cnt > start and (cnt - start) % every == 0:
                acc += per
                while acc >= 1 and k < len(fill):
                    f = fill[k]
                    k += 1
                    if isinstance(f, (list, tuple)):
                        out.extend(f)
                        acc -= 1
                    else:
                        out.append(f)
                        if f.kind == "i" and not f.t.startswith("s_"):
                            acc -= 2 if f.t.startswith(TRANS) else 1
    for f in fill[k:]:
        if isinstance(f, (list, tuple)):
            out.extend(f)
        else:
            out.append(f)
    return out
```

```python
import sys, struct, json
from asmlib import *

NAME = "adaLN_cond__linear_kernel_hedgehog__geglu_ffn__prompt"
ARGS = sys.argv[1:]
def flag(n): return f"--{n}" in ARGS
def opt(n, d):
    for a_ in ARGS:
        if a_.startswith(f"--{n}="):
            return type(d)(a_.split("=", 1)[1])
    return d
STAMPS = flag("stamps")
OUTF = [a_ for a_ in ARGS if not a_.startswith("--")]
OUTF = OUTF[0] if OUTF else f"cdna_kernels/{NAME}.s"
want = opt("only", "").split(",") if opt("only", "") else None

W_EPOCH = 0
W_RDY = 0x8000
W_RDY2 = 0x18000
W_FL = 0x10000
F_H, F_O, F_Y, F_ACT = 0, 1024, 1536, 2048
W_MODP = 0x20000
W_Z = 0x40000
W_ST2 = 0x80000
W_KV = 0x100000
W_H = 0x200000
W_ACT = 0x400000
ACT_RT = 96 * 1024
if flag("noalias"):
    W_Y, W_O = 0xA00000, 0xC00000
else:
    W_Y, W_O = W_H, W_ACT
W_STAMP = 0x1200000
WS_BYTES = 0x1300000 if (STAMPS or flag("noalias")) else 0xA00000

K = 1024
L_WQ, L_PL, L_WK, L_WV = 0, 32 * K, 64 * K, 96 * K
L_X, L_MRED, L_AS, L_MODE = 32 * K, 42 * K, 44 * K, 48 * K
XROW = 1056
L_XT = 128 * K
L_WO, L_O = 0, 64 * K
DCH = 12352
DPART = 3088
L_G1 = 64 * K
L_YP = [112 * K, 0, 32 * K, 64 * K]
L_WD, WDW = 96 * K, 13 * K
L_MISC = L_G1 + 7 * DCH
L_WPHI = L_MISC
L_KVS = L_WPHI + 1024
L_MODL = L_KVS + 2304
L_EXT = L_MODL + 4096
L_KC = L_EXT + 2048
L_RS2 = L_KC + 1024
assert L_RS2 + 512 <= 160 * K and L_MISC >= 148 * K and L_MISC % 64 == 0

sX, sWQKV, sWO, sWG, sWU, sWD, sWM, sOUT, sWS = [f"s[{4+4*i}:{7+4*i}]" for i in range(9)]
sC, sPHI = "s[40:41]", "s[42:43]"
sTAG, sG, sJ, sW, sRB, sHP, sCR, sCC = [f"s{44+i}" for i in range(8)]
sGU = "s[52:55]"
sT = [f"s{56+i}" for i in range(8)]
sCNT = "s64"
sL2E = "s65"
sFLG = "s66"
sXCC = "s67"
sKS = [f"s{68+i}" for i in range(11)]
sXO = "s3"
sB = [f"s{79+i}" for i in range(5)]
sTB = ["s0", "s1", "s40", "s41"]
SSTAMP0 = 84
SPIN = 30000

def v(n, c=1): return f"v{n}" if c == 1 else f"v[{n}:{n+c-1}]"
def a(n, c=1): return f"a{n}" if c == 1 else f"a[{n}:{n+c-1}]"
def srd_lo(s): return int(s[2:s.index(":")])
f2h = lambda x: "0x%08x" % struct.unpack("<I", struct.pack("<f", x))[0]

def unpack(q, src, lo, hi):
    q(f"v_lshlrev_b32 {lo}, 16, {src}")
    q(f"v_and_b32 {hi}, 0xffff0000, {src}")

def pack(q, src, dst, n):
    for e in range(n):
        q(f"v_cvt_pk_bf16_f32 v{dst+e}, v{src+2*e}, v{src+2*e+1}")

def lin(q, dst, terms, const=0, tmp=None):
    tmp = tmp or sT[7]
    first = True
    for r, m in terms:
        d = dst if first else tmp
        if m == 1 and not first:
            q(f"s_add_u32 {dst}, {dst}, {r}")
            continue
        if m == 1:
            if const:
                q(f"s_add_u32 {dst}, {r}, {const}")
                const = 0
            elif dst != r:
                q(f"s_mov_b32 {dst}, {r}")
            first = False
            continue
        if m & (m - 1) == 0:
            q(f"s_lshl_b32 {d}, {r}, {m.bit_length()-1}")
        else:
            q(f"s_mul_i32 {d}, {r}, {m}")
        if not first:
            q(f"s_add_u32 {dst}, {dst}, {tmp}")
        first = False
    if const:
        q(f"s_add_u32 {dst}, {dst}, {const & 0xffffffff}")

def sprinkle(main, items, first, step):
    main = main.L if isinstance(main, Prog) else main
    out, k, n, nxt = [], 0, 0, first
    if first == 0 and items:
        out.extend(items[0]); k = 1; nxt = step
    for i in main:
        out.append(i)
        if i.kind == "i":
            n += 1
            while k < len(items) and n >= nxt:
                out.extend(items[k]); k += 1; nxt += step
    for it in items[k:]:
        out.extend(it)
    return out

vL, vL16, vTAG, vL4 = "v1", "v2", "v3", "v4"
vTRN, vTRV = "v5", "v6"
vR32, vHF, vQ, vD16 = "v7", "v8", "v9", "v10"
vJUNK = "v11"
```

```python
from g3a import *

vRT = 56
vDS = 28
vDG, vDX, vA8, vXO = "v60", "v61", "v62", "v63"
vWF, NS = 32, 6


def constants(p, grp):
    t0, t1, t2 = "s76", "s77", "s78"
    if grp == "B":
        p(f"v_bfe_u32 v12, {vL}, 2, 2")
        p(f"v_lshlrev_b32 v12, 6, v12")
        p(f"v_lshl_add_u32 v12, {vHF}, 9, v12")
        p(f"v_and_b32 v13, 3, {vL}")
        p(f"v_and_b32 v14, 1, {vQ}")
        p(f"v_lshl_add_u32 v15, v14, 2, v13")
        p(f"v_lshl_add_u32 {vTRN}, v15, 3, v12")
        p(f"v_and_b32 v16, 1, v15")
        p(f"v_lshrrev_b32 v17, 1, v15")
        p(f"v_lshl_add_u32 v16, v16, 2, v17")
        p(f"v_lshl_add_u32 {vTRV}, v16, 3, v12")
    if grp == "R":
        p(f"v_and_b32 v14, 1, {vQ}")
        p(f"v_lshlrev_b32 v12, 3, v14")
        p(f"v_sub_u32 v12, {vD16}, v12")
        p(f"v_and_b32 v13, 1, v12")
        p(f"v_lshlrev_b32 v13, 4, v13")
        p(f"v_mov_b32 v15, 0x3f80")
        p(f"v_lshlrev_b32 v13, v13, v15")
        p(f"v_ashrrev_i32 v12, 1, v12")
        for n in range(4):
            p(f"v_cmp_eq_u32 s[{68+2*n}:{69+2*n}], {n}, v12")
        for n in range(4):
            p(f"v_cndmask_b32 v{vRT+n}, 0, v13, s[{68+2*n}:{69+2*n}]")
    if grp == "G":
        for n in range(3):
            p(f"v_add_u32 v12, {64*n}, {vL}")
            p(f"v_mul_u32_u24 v13, 5462, v12")
            p(f"v_lshrrev_b32 v13, 16, v13")
            p(f"v_mul_u32_u24 v16, 12, v13")
            p(f"v_sub_u32 v12, v12, v16")
            if n == 1:
                p(f"v_lshrrev_b32 v16, 3, v13")
                p(f"v_lshlrev_b32 v16, 1, v16")
                p(f"v_xor_b32 v12, v12, v16")
            if n == 2:
                p(f"v_xor_b32 v12, 2, v12")
            p(f"v_mul_u32_u24 v13, 2752, v13")
            p(f"v_lshl_add_u32 v{vDS+n}, v12, 4, v13")
            if n:
                p(f"v_subrev_u32 v{vDS+n}, {1024*n}, v{vDS+n}")
        p(f"v_and_b32 v14, 1, {vQ}")
        p(f"v_bfe_u32 v13, {vL}, 2, 2")
        p(f"v_lshl_add_u32 v13, v14, 3, v13")
        p(f"v_mul_u32_u24 v13, 192, v13")
        p(f"v_mul_u32_u24 v16, {2*DPART}, {vHF}")
        p(f"v_add_u32 v13, v13, v16")
        p(f"v_lshlrev_b32 v12, 5, v14")
        p(f"s_lshr_b32 {t0}, {sW}, 1")
        p(f"s_mul_i32 {t0}, {t0}, 96")
        p(f"s_and_b32 {t1}, {sW}, 1")
        p(f"s_lshl_b32 {t2}, {t1}, 6")
        p(f"s_add_u32 {t2}, {t2}, {t0}")
        p(f"s_lshl4_add_u32 {t1}, {t1}, {t0}")
        p(f"s_add_u32 {t1}, {t1}, 32")
        p(f"v_and_b32 v16, 1, {vL}")
        p(f"v_bfe_u32 v17, {vL}, 1, 1")
        p(f"v_lshl_add_u32 v18, v16, 1, v17")
        p(f"v_lshl_add_u32 v18, v18, 3, {t2}")
        p(f"v_xor_b32 v18, v18, v12")
        p(f"v_add_u32 {vDG}, v18, v13")
        p(f"v_lshl_add_u32 v18, v16, 3, {t1}")
        p(f"v_xor_b32 v18, v18, v12")
        p(f"v_mul_u32_u24 v17, {DPART}, v17")
        p(f"v_add3_u32 {vDX}, v18, v13, v17")
    if grp == "X":
        p(f"v_bfe_u32 v12, {vL}, 2, 3")
        p(f"v_lshlrev_b32 v12, 10, v12")
        p(f"v_lshl_add_u32 v12, {vHF}, 6, v12")
        p(f"v_and_b32 v13, 3, {vL}")
        p(f"v_lshl_add_u32 {vA8}, v13, 4, v12")
        p(f"v_lshlrev_b32 v12, 10, {vR32}")
        p(f"v_lshl_add_u32 {vXO}, {vHF}, 5, v12")
        p(f"s_lshr_b32 {t0}, {sW}, 1")
        p(f"s_and_b32 {t1}, {sW}, 1")
        lin(p, sXO, [(sG, 1 << 18), (sCR, 1 << 16), (t0, 1 << 15), (sCC, 128), (t1, 64)])


def kstep(i):
    m, r = divmod(i, 3)
    return (0, 24 * m) if r == 0 else (1, 24 * m + 4) if r == 1 else (0, 24 * m + 14)


def wread(q, slot, addr, off):
    r = vWF + 4 * slot
    q(f"ds_read_b64_tr_b16 {v(r,2)}, {addr} offset:{off}")
    return q(f"ds_read_b64_tr_b16 {v(r+2,2)}, {addr} offset:{off+256}")


def softmax(q, P, out):
    q(f"v_max3_f32 v12, v{P}, v{P+1}, v{P+2}")
    q(f"v_max3_f32 v13, v{P+3}, v{P+4}, v{P+5}")
    q(f"v_max3_f32 v12, v12, v{P+6}, v{P+7}")
    q(f"v_max3_f32 v13, v13, v{P+8}, v{P+9}")
    q(f"v_max3_f32 v12, v12, v{P+10}, v{P+11}")
    q(f"v_max3_f32 v13, v13, v{P+12}, v{P+13}")
    q(f"v_max3_f32 v12, v12, v{P+14}, v{P+15}")
    q(f"v_max_f32 v12, v12, v13")
    for n in range(8):
        r = P + 2 * n
        q(f"v_pk_add_f32 {v(r,2)}, {v(r,2)}, v[12:13] op_sel_hi:[1,0] neg_lo:[0,1] neg_hi:[0,1]")
    for n in range(8):
        r = P + 2 * n
        q(f"v_pk_mul_f32 {v(r,2)}, {v(r,2)}, s[64:65] op_sel:[0,1]")
    for n in range(16):
        q(f"v_exp_f32 v{P+n}, v{P+n}")
    q(f"v_pk_add_f32 v[12:13], {v(P,2)}, {v(P+2,2)}")
    q(f"v_pk_add_f32 v[16:17], {v(P+4,2)}, {v(P+6,2)}")
    q(f"v_pk_add_f32 v[12:13], v[12:13], {v(P+8,2)}")
    q(f"v_pk_add_f32 v[16:17], v[16:17], {v(P+10,2)}")
    q(f"v_pk_add_f32 v[12:13], v[12:13], {v(P+12,2)}")
    q(f"v_pk_add_f32 v[16:17], v[16:17], {v(P+14,2)}")
    q(f"v_pk_add_f32 v[12:13], v[12:13], v[16:17]")
    q(f"v_add_f32 v12, v12, v13")
    q(f"v_rcp_f32 v12, v12")
    for n in range(8):
        r = P + 2 * n
        q(f"v_pk_mul_f32 {v(r,2)}, {v(r,2)}, v[12:13] op_sel_hi:[1,0]")
    for n in range(8):
        q(f"v_cvt_pk_bf16_f32 v{out+n}, v{P+2*n}, v{P+2*n+1}")


def gu_items(ch, laddr):
    out = []
    for n in range(3):
        q = Prog()
        if n == 0:
            q(f"s_add_u32 m0, {sB[1]}, {laddr}")
            q(f"s_add_u32 {sB[2]}, {sB[0]}, {ch*32*2752}")
        q(f"buffer_load_dwordx4 {v(vDS+n)}, {sGU}, {sB[2]} offen offset:{1024*n} lds")
        out.append(q.L)
    return out


def gu_read(q, chunks, ta="v12", tb="v13"):
    base = None
    for ch, laddr in chunks:
        if base is None or not (0 <= laddr - base and laddr - base + DPART + 768 < 65536):
            base = laddr
            q(f"v_add_u32 {ta}, {base}, {vDG}")
            q(f"v_add_u32 {tb}, {base}, {vDX}")
        o = laddr - base
        for T, (ad, oo) in enumerate(((ta, 0), (ta, DPART), (tb, 0))):
            r = 12 * ch + 4 * T
            q(f"ds_read_b64_tr_b16 {a(r,2)}, {ad} offset:{o+oo}")
            t = q(f"ds_read_b64_tr_b16 {a(r+2,2)}, {ad} offset:{o+oo+768}")
    return t


vUT = 128
vUF = 144


def ut_part(q, chunks, first):
    q(f"v_and_b32 v12, 1, {vL}")
    q(f"v_lshlrev_b32 v12, 10, v12")
    q(f"v_sub_u32 v12, {L_MODL+2048}, v12")
    q(f"v_lshl_add_u32 v12, {vQ}, 4, v12")
    rd = [q(f"ds_read_b128 {v(vUF+4*n,4)}, v12 offset:{64*ks}") for n, ks in enumerate(chunks)]
    for n, ks in enumerate(chunks):
        q.wl(rd[n])
        for T in range(3):
            acc = vUT + 4 * T
            q(f"v_mfma_f32_16x16x32_bf16 {v(acc,4)}, {v(vUF+4*n,4)}, {a(12*ks+4*T,4)}, {'0' if first and n==0 else v(acc,4)}")


def rest(c):
    p, SC, sfx, stamp, polled, flagpoll, publish = c.p, c.SC, c.sfx, c.stamp, c.polled, c.flagpoll, c.publish
    vH = 128
    aK, aV, aQ, aP = 64, 80, 96, 112
    vKVA = "v0"
    lin(p, sT[3], [(sRB, 4), (sW, 1)])
    lin(p, sT[0], [(sT[3], 128), (sFLG, 1)])
    p(f"v_lshlrev_b32 v14, 2, {vD16}")
    bh = Prog()
    lin(bh, sT[1], [(sG, 8), (sT[3], 1)])
    lin(bh, sT[2], [(sT[1], 32768)], W_H)
    lin(bh, sT[4], [(sT[1], ACT_RT), (sHP, 2048)], W_O)
    lin(bh, sT[3], [(sT[3], 64), (sHP, 4), (sFLG, 1)])
    flagpoll(p, "v14", sT[0], F_H, "v13", bh)
    stamp("gotH")
    hl = []
    for ks in range(32):
        hl.append(p(f"buffer_load_dwordx4 {v(vH+4*ks,4)}, {vL16}, {sWS}, {sT[2]} offen offset:{1024*(ks&3)} sc1"))
        if ks & 3 == 3 and ks < 31:
            p(f"s_add_u32 {sT[2]}, {sT[2]}, 4096")
        if ks == opt("hbar", 7):
            p("s_waitcnt lgkmcnt(0)")
            p("s_barrier")
            hpos = len(p.L)
    late = p.L[hpos:]
    del p.L[hpos:]
    late = [[i] for i in late]
    k_ = 0
    items = []
    for it in late:
        if it[0].t.startswith("s_add"):
            items[-1] = items[-1] + it
        else:
            items.append(it)
    q = Prog()
    vPH = 20
    q(f"v_bfe_u32 v12, {vL}, 2, 2")
    q(f"v_lshl_add_u32 v12, {vHF}, 2, v12")
    q(f"v_lshlrev_b32 v12, 5, v12")
    q(f"v_bfe_u32 v13, {vL}, 1, 1")
    q(f"v_and_b32 v14, 1, {vQ}")
    q(f"v_lshl_add_u32 v13, v14, 1, v13")
    q(f"v_lshl_add_u32 v12, v13, 3, v12")
    q(f"v_add_u32 v12, {L_WPHI}, v12")
    for hh in range(2):
        q(f"ds_read_b64_tr_b16 {v(vPH+4*hh,2)}, v12 offset:{512*hh}")
        tph = q(f"ds_read_b64_tr_b16 {v(vPH+4*hh+2,2)}, v12 offset:{512*hh+256}")
    q(f"v_bfe_i32 v13, {vL}, 2, 1")
    q(f"v_and_b32 v13, 0x80008000, v13")
    q(f"v_add_u32 v14, {L_WK}, {vTRN}")
    q(f"v_add_u32 v18, {L_WV}, {vTRV}")
    q.wl(tph)
    for r in range(8):
        q(f"v_xor_b32 v{vPH+r}, v13, v{vPH+r}")
    lin(q, sT[0], [(sW, 1024)], L_PL)
    q(f"v_lshl_add_u32 v15, {vR32}, 5, {sT[0]}")
    q(f"v_lshl_add_u32 v15, {vHF}, 12, v15")
    p.ext(q)
    q = Prog()
    seq = [(ks, t) for ks in range(32) for t in range(2)]
    rd = {}
    PRE = 4
    for n in range(PRE):
        ks, t = seq[n]
        rd[n] = wread(q, n % NS, "v18" if t else "v14", 1024 * ks)
    items = items + c.qd[c.NQ0:]
    for n, (ks, t) in enumerate(seq):
        if n + PRE < len(seq):
            k2, t2 = seq[n + PRE]
            rd[n + PRE] = wread(q, (n + PRE) % NS, "v18" if t2 else "v14", 1024 * k2)
        if t == 0:
            q.wv(hl[ks])
        q.wl(rd[n])
        acc = aV if t else aK
        q(f"v_mfma_f32_32x32x16_bf16 {v(acc,16)}, {v(vWF+4*(n%NS),4)}, {v(vH+4*ks,4)}, {'0' if ks==0 else v(acc,16)}")
        if t == 0 and items:
            q.ext(items.pop(0))
    p.ext(q)
    tq = c.qd[-1][-1]
    stamp("kvGemm")
    assert not items
    main = p
    lin(p, sT[0], [(sW, 64 * 128), (sHP, 128)], W_RDY2)
    p(f"v_and_b32 v31, 3, {vL}")
    p(f"v_lshl_add_u32 v31, v31, 11, {sT[0]}")
    p = Prog()
    if c.tp("q"):
        p(f"v_lshlrev_b32 v12, 7, {vL}")
        c.touches(p, c.tp("q"), "v12")
    q = Prog()
    pack(q, aK, 32, 8)
    q(f"v_mfma_f32_32x32x16_bf16 {v(aP,16)}, {v(vPH,4)}, v[32:35], 0")
    q(f"v_mfma_f32_32x32x16_bf16 {v(aQ,16)}, {v(vPH+4,4)}, v[36:39], 0")
    pack(q, aV, 40, 8)
    q(f"ds_write_b128 v15, v[40:43] offset:16384")
    q(f"ds_write_b128 v15, v[44:47] offset:16400")
    softmax(q, aP, 32)
    q(f"ds_write_b128 v15, v[32:35]")
    q(f"ds_write_b128 v15, v[36:39] offset:16")
    softmax(q, aQ, 48)
    q(f"ds_write_b128 v15, v[48:51] offset:8192")
    q(f"ds_write_b128 v15, v[52:55] offset:8208")
    p.ext(sprinkle(q, items, 10, 20))
    lin(p, sT[0], [(sW, 4096)], L_PL)
    p(f"v_lshl_add_u32 v12, {vL}, 3, {sT[0]}")
    p(f"s_lshr_b32 {sT[1]}, {sW}, 1")
    lin(p, sT[0], [(sT[1], 4096)], L_PL + 16384)
    p(f"v_lshl_add_u32 v13, {vL}, 3, {sT[0]}")
    for r in range(4):
        p(f"v_mov_b32 v{16+r}, 0x3f803f80")
    p("s_waitcnt lgkmcnt(0)")
    p("s_barrier")
    stamp("phiK", p)
    tr = []
    for s_ in range(4):
        p(f"ds_read_b64_tr_b16 {v(64+8*s_,2)}, v12 offset:{1024*s_}")
        p(f"ds_read_b64_tr_b16 {v(66+8*s_,2)}, v12 offset:{1024*s_+512}")
        p(f"ds_read_b64_tr_b16 {v(68+8*s_,2)}, v13 offset:{1024*s_}")
        tr.append(p(f"ds_read_b64_tr_b16 {v(70+8*s_,2)}, v13 offset:{1024*s_+512}"))
    lin(p, sB[0], [(sT[1], 16 * 2752), (sHP, 192)])
    p(f"s_mul_i32 {sB[1]}, {sW}, {DPART}")
    for s_ in range(4):
        p.wl(tr[s_])
        p(f"v_mfma_f32_16x16x32_bf16 v[112:115], {v(64+8*s_,4)}, {v(68+8*s_,4)}, {'0' if s_==0 else 'v[112:115]'}")
        p(f"v_mfma_f32_16x16x32_bf16 v[116:119], {v(64+8*s_,4)}, v[16:19], {'0' if s_==0 else 'v[116:119]'}")
    pack(p, 112, 112, 4)
    p("v_permlane16_swap_b32 v112, v114")
    p("v_permlane16_swap_b32 v113, v115")
    p("s_mov_b32 exec_lo, 0x1ffff")
    p("s_mov_b32 exec_hi, 0x1ffff")
    p(f"buffer_store_dwordx4 v[112:115], {vKVA}, {sWS}, 0 offen sc1")
    p("s_mov_b64 exec, -1")
    stamp("pubKV", p)
    NG1A, NG1 = opt("g1a", 4), opt("g1", 5)
    G1 = [(ch, L_G1 + ch * DCH) for ch in range(NG1)]
    g1 = [it for ch, la in G1 for it in gu_items(ch, la)]
    g1a, g1b = g1[:3 * NG1A], g1[3 * NG1A:]
    if c.tp("k"):
        p(f"v_lshlrev_b32 v12, 7, {vL}")
        c.touches(p, c.tp("k"), "v12")
    p.ext(g1a.pop(0))
    flagpoll(main, "v31", "0", 0, "v14", p)
    p = main
    p("s_barrier")
    q = Prog()
    rd = {}
    for n in range(PRE):
        rd[n] = wread(q, n % NS, vTRN, L_WQ + 1024 * n)
    for ks in range(32):
        if ks + PRE < 32:
            rd[ks + PRE] = wread(q, (ks + PRE) % NS, vTRN, L_WQ + 1024 * (ks + PRE))
        q.wl(rd[ks])
        q(f"v_mfma_f32_32x32x16_bf16 {v(aQ,16)}, {v(vWF+4*(ks%NS),4)}, {v(vH+4*ks,4)}, {'0' if ks==0 else v(aQ,16)}")
        if ks % opt("g1step", 4) == 0 and g1a:
            q.ext(g1a.pop(0))
    p.ext(q)
    stamp("qGemm")
    vKG = 128
    lin(p, sT[5], [(sHP, 4), (sW, 1)])
    lin(p, sT[0], [(sT[5], 8192)], W_KV)
    p(f"s_add_u32 {sT[1]}, {sT[0]}, 4096")
    lin(p, sT[2], [(sT[5], 2048)], W_Z)
    p(f"v_lshrrev_b32 v14, 1, {vD16}")
    p(f"v_lshl_add_u32 v14, {vHF}, 3, v14")
    p(f"v_and_b32 v15, 1, {vL}")
    p(f"v_lshlrev_b32 v15, 4, v15")
    p(f"v_lshl_add_u32 v14, v14, 7, v15")
    q = Prog()
    pack(q, aQ, 32, 8)
    q(f"v_mfma_f32_32x32x16_bf16 {v(aP,16)}, {v(vPH,4)}, v[32:35], 0")
    q(f"v_mfma_f32_32x32x16_bf16 {v(aK,16)}, {v(vPH+4,4)}, v[36:39], 0")
    for r in range(4):
        q(f"v_mov_b32 v{vKG+32+r}, 0")
    vFQ = 40
    softmax(q, aP, vFQ)
    softmax(q, aK, vFQ + 8)
    stamp("phiQ", q)
    lin(q, sT[6], [(sW, 576)], L_KVS)
    q(f"v_lshl_add_u32 v16, {vQ}, 3, {sT[6]}")
    q(f"v_lshl_add_u32 v17, {vD16}, 5, v16")
    q(f"v_lshl_add_u32 v16, {vHF}, 4, v16")
    q(f"v_add_u32 v16, v16, v15")
    q(f"v_bfe_u32 v12, {vL}, 2, 1")
    q(f"v_bfe_u32 v13, {vL}, 3, 1")
    q(f"v_and_b32 v18, 3, {vL}")
    q(f"v_lshl_add_u32 v18, v12, 3, v18")
    q(f"v_lshl_add_u32 v18, v13, 2, v18")
    q(f"v_cmp_lt_u32 vcc, 15, {vR32}")
    q(f"v_cndmask_b32 v18, v18, 16, vcc")
    q(f"v_lshlrev_b32 v18, 5, v18")
    q(f"v_mul_u32_u24 v12, 576, {vHF}")
    q(f"v_add_u32 v12, {L_KVS}, v12")
    q(f"v_add_u32 v18, v18, v12")
    cut = opt("kvcut", 60)
    p.ext(sprinkle(q.L[:cut], g1a, 4, 12))
    vXT = 20

    def issuek(z):
        z("s_mov_b32 exec_lo, 0xffff")
        z("s_mov_b32 exec_hi, 0xffff")
        z(f"buffer_load_dwordx4 {v(vKG+32,4)}, v14, {sWS}, {sT[2]} offen sc1")
        z("s_mov_b64 exec, -1")
        for P in range(8):
            t = z(f"buffer_load_dwordx4 {v(vKG+4*P,4)}, {vL16}, {sWS}, {sT[P>>2]} offen offset:{1024*(P&3)} sc1")
        return t

    def checkk(z):
        z(f"v_mfma_f32_16x16x32_bf16 v[116:119], {v(vRT,4)}, {v(vKG+32,4)}, 0")
        for P in range(8):
            z(f"v_mfma_f32_16x16x32_bf16 v[112:115], {v(vRT,4)}, {v(vKG+4*P,4)}, {'0' if P==0 else 'v[112:115]'}")
            if P == 0:
                z(f"v_max3_u32 v12, v{vKG}, v{vKG+4}, v{vKG+8}")
            elif P < 4:
                z(f"v_max3_u32 v12, v12, v{vKG+4+8*P}, v{vKG+8+8*P}")
            if P in (3, 4, 5):
                for r in range(4):
                    z(f"v_add_f32_dpp v{116+r}, v{116+r}, v{116+r} row_ror:{2<<(P-3)} row_mask:0xf bank_mask:0xf")
        pack(z, 116, 116, 2)
        z("v_cmp_eq_u32 vcc, -1, v12")
    polled(p, issuek, checkk, sprinkle(q.L[cut:], g1b, 30, 15))
    stamp("gotKV")
    p("ds_write_b64 v16, v[116:117] offset:512")
    pack(p, 112, 112, 2)
    p("ds_write_b64 v17, v[112:113]")
    lin(p, sB[3], [(sW, 1 << 17), (sCC, 128)])
    p(f"s_lshl_b32 {sB[4]}, {sW}, 14")

    def wo_item(n):
        q = Prog()
        if n & 3 == 0:
            q(f"s_add_u32 m0, {sB[4]}, {L_WO + 1024*n}")
        q(f"s_add_u32 {sB[2]}, {sB[3]}, {n*8192 - 1024*(n&3)}")
        q(f"buffer_load_dwordx4 {vA8}, {sWO}, {sB[2]} offen offset:{1024*(n&3)} lds")
        return q.L
    wod = [wo_item(n) for n in range(16)]
    p("s_waitcnt lgkmcnt(0)")
    p("s_barrier")
    tr = []
    for hh in range(2):
        for s_ in range(2):
            tr.append(p(f"ds_read_b128 {v(64+8*hh+4*s_,4)}, v18 offset:{1152*hh+16*s_}"))
    for n in range(opt("wo0", 4)):
        p.ext(wod.pop(0))
    for hh in range(2):
        for s_ in range(2):
            p.wl(tr[2 * hh + s_])
            acc = 96 + 16 * hh
            p(f"v_mfma_f32_32x32x16_bf16 {v(acc,16)}, {v(64+8*hh+4*s_,4)}, {v(vFQ+8*hh+4*s_,4)}, {'0' if s_==0 else v(acc,16)}")
    for hh in range(2):
        acc = 96 + 16 * hh
        p(f"v_add_f32 v{acc+8}, 0x358637bd, v{acc+8}")
        p(f"v_rcp_f32 v{acc+8}, v{acc+8}")
        for e in range(4):
            p(f"v_pk_mul_f32 {v(acc+2*e,2)}, {v(acc+2*e,2)}, {v(acc+8,2)} op_sel_hi:[1,0]")
        pack(p, acc, acc + 12, 4)
        to = p(f"buffer_store_dwordx4 {v(acc+12,4)}, {vL16}, {sWS}, {sT[4]} offen offset:{1024*hh}{c.SD('o')}")
    stamp("stO")
    for n in range(opt("wo1", 4)):
        p.ext(wod.pop(0))
    publish(p, sT[3], F_O, to)
    stamp("pubO")
    two = wod[-1][-1]
    for it in wod:
        p.ext(it)
    p("s_barrier")
    gu_read(p, G1)
    ut_part(p, [ch for ch, la in G1], True)

    lin(p, sT[3], [(sG, 4), (sCR, 1)])
    lin(p, sT[0], [(sCR, 128), (sFLG, 1)])
    p(f"v_lshlrev_b32 v12, 2, {vR32}")
    bh = Prog()
    bh(f"s_lshr_b32 {sT[5]}, {sW}, 1")
    bh(f"s_and_b32 {sT[6]}, {sW}, 1")
    lin(bh, sT[1], [(sT[3], 2 * ACT_RT), (sT[5], ACT_RT), (sT[6], 4096)], W_O)
    lin(bh, sT[2], [(sT[5], 32768)], L_O)
    bh(f"v_add_u32 v14, {sT[2]}, {vL16}")
    lin(bh, sT[2], [(sT[2], 1), (sT[6], 4096)])
    vTC = "v31"
    bh(f"s_lshl_b32 {sT[7]}, {sT[6]}, 9")
    bh(f"v_lshl_add_u32 {vTC}, {vHF}, 9, {vTRV}")
    bh(f"v_add_u32 {vTC}, {sT[7]}, {vTC}")
    flagpoll(p, "v12", sT[0], F_O, "v13", bh)
    p("s_barrier")
    stamp("gotO")
    ol = []
    for ch in range(4):
        p(f"s_add_u32 m0, {sT[2]}, {8192*ch}")
        for n in range(4):
            t = p(f"buffer_load_dwordx4 {vL16}, {sWS}, {sT[1]} offen offset:{1024*n} sc1 lds")
        ol.append(t)
        if ch < 3:
            p(f"s_add_u32 {sT[1]}, {sT[1]}, 8192")
    if c.tp("c"):
        p(f"v_lshlrev_b32 v12, 7, {vL}")
        c.touches(p, c.tp("c"), "v12")
    p(f"s_cmp_eq_u32 s2, 0")
    p(f"s_cbranch_scc0 C_NOEP{sfx}")
    p.rb()
    p("s_mov_b64 exec, 1")
    p(f"buffer_store_dword {vTAG}, off, {sWS}, 0 sc1")
    p("s_mov_b64 exec, -1")
    p.re_()
    p.label(f"C_NOEP{sfx}")
    vMV = "v59"
    lin(p, sT[4], [(sCC, 2), (sT[6], 1)])
    lin(p, sT[0], [(sT[4], 64)], L_MODL)
    p(f"v_lshl_add_u32 {vMV}, {vHF}, 5, {sT[0]}")
    p(f"ds_read_b128 v[32:35], {vMV}")
    tg = p(f"ds_read_b128 v[36:39], {vMV} offset:16")
    p(f"ds_read_b128 v[40:43], {vMV} offset:2048")
    ta = p(f"ds_read_b128 v[44:47], {vMV} offset:2064")
    vCX, vCG, vCA = 80, 160, 176
    for e in range(8):
        p(f"v_accvgpr_read_b32 v{vXT+e}, a{192+e}")
    for e in range(8):
        unpack(p, v(vXT + e), v(vCX + 2 * e), v(vCX + 1 + 2 * e))
    p.wl(tg)
    for e in range(8):
        unpack(p, v(32 + e), v(vCG + 2 * e), v(vCG + 1 + 2 * e))
    p.wl(ta)
    for e in range(8):
        unpack(p, v(40 + e), v(vCA + 2 * e), v(vCA + 1 + 2 * e))
    lin(p, sT[5], [(sT[5], 1), (sT[3], 2)])
    lin(p, sT[0], [(sT[5], 32768), (sT[4], 1024)], W_Y)
    lin(p, sT[1], [(sT[5], 4096), (sT[4], 256)], W_ST2)
    p(f"s_and_b32 {sT[5]}, {sT[5]}, 7")
    lin(p, sT[2], [(sT[5], 64), (sT[4], 4), (sFLG, 1)])
    p(f"v_and_b32 v12, 1, {vQ}")
    p(f"v_lshlrev_b32 v12, 14, v12")
    p(f"v_lshl_add_u32 v12, {vHF}, 9, v12")
    p(f"v_lshl_add_u32 v15, {vD16}, 4, v12")
    vX1 = 64
    vOF = 96
    for ch in range(4):
        p.wv(ol[ch])
        p("s_barrier")
        rd = {}

        def cread(n):
            ks = 8 * ch + n
            wread(p, ks % NS, vTC, L_WO + 2048 * ks)
            return p(f"ds_read_b128 {v(vOF+4*(ks%NS),4)}, v14 offset:{1024*ks}")
        for n in range(4):
            rd[n] = cread(n)
        for n in range(8):
            ks = 8 * ch + n
            if n + 4 < 8:
                rd[n + 4] = cread(n + 4)
            p.wl(rd[n])
            if ks == 31:
                p("s_barrier")
            p(f"v_mfma_f32_32x32x16_bf16 {v(vX1,16)}, {v(vWF+4*(ks%NS),4)}, {v(vOF+4*(ks%NS),4)}, {'0' if ks==0 else v(vX1,16)}")
    stamp("cGemm")
    rem = list(range(NG1, 16))
    na = opt("g2a", 5)
    G2a = [(ch, n * DCH) for n, ch in enumerate(rem[:na])]
    G2b = [(ch, n * DCH) for n, ch in enumerate(rem[:9])][na:]
    G2c = [(ch, 32 * K + 4096 + n * DCH) for n, ch in enumerate(rem[9:])]
    assert not G2c or G2c[-1][1] + DCH <= na * DCH
    g2a = [it for ch, la in G2a for it in gu_items(ch, la)]
    g2b = [it for ch, la in G2b for it in gu_items(ch, la)]
    g2c = [it for ch, la in G2c for it in gu_items(ch, la)]
    for n in range(opt("g20", 0)):
        p.ext(g2a.pop(0))
    for e in range(8):
        r = vX1 + 2 * e
        p(f"v_pk_fma_f32 {v(r,2)}, {v(r,2)}, {v(vCG+2*e,2)}, {v(vCX+2*e,2)}")
    for h in range(2):
        for e in range(4 * h, 4 * h + 4):
            p(f"v_pk_mul_f32 {v(vCA+2*e,2)}, {v(vX1+2*e,2)}, {v(vCA+2*e,2)}")
        pack(p, vCA + 8 * h, 32 + 4 * h, 4)
        p(f"buffer_store_dwordx4 {v(32+4*h,4)}, v15, {sWS}, {sT[0]} offen offset:{256*h}{c.SD('y')}")
    p(f"v_pk_add_f32 v[16:17], {v(vX1,2)}, {v(vX1+2,2)}")
    p(f"v_pk_mul_f32 v[18:19], {v(vX1,2)}, {v(vX1,2)}")
    for e in range(1, 8):
        r = vX1 + 2 * e
        if e > 1:
            p(f"v_pk_add_f32 v[16:17], v[16:17], {v(r,2)}")
        p(f"v_pk_fma_f32 v[18:19], {v(r,2)}, {v(r,2)}, v[18:19]")
    p("v_add_f32 v16, v16, v17")
    p("v_add_f32 v18, v18, v19")
    p("v_permlane32_swap_b32 v16, v18")
    p("v_add_f32 v16, v16, v18")
    ty = p(f"buffer_store_dword v16, {vL4}, {sWS}, {sT[1]} offen{SC}")
    stamp("stY")
    for n in range(opt("g21", 2)):
        p.ext(g2a.pop(0))
    publish(p, sT[2], F_Y, ty)
    stamp("pubY")
    import g3c as g2c_mod
    g2c_mod.rest(c, locals())
```

```python
from g3a import *
from g3b import *


def rest(c, L):
    p, SC, sfx, stamp, polled, flagpoll, publish = c.p, c.SC, c.sfx, c.stamp, c.polled, c.flagpoll, c.publish
    g2a, g2b, g2c, G2a, G2b, G2c = (L[k] for k in ("g2a", "g2b", "g2c", "G2a", "G2b", "G2c"))
    vTC, vMV, vX1 = L["vTC"], L["vMV"], L["vX1"]
    nb = 3 * opt("g2p", 1)
    for it in g2a[:len(g2a) - nb]:
        p.ext(it)
    lin(p, sT[0], [(sRB, 256), (sFLG, 1)])
    bh = Prog()
    for it in g2a[len(g2a) - nb:]:
        bh.ext(it)
    lin(bh, sT[4], [(sG, 2), (sRB, 1)])
    bh(f"s_and_b32 {sT[5]}, {sHP}, 1")
    bh(f"s_lshl_b32 {sT[1]}, {sT[5]}, 1")
    bh(f"s_xor_b32 {sT[1]}, {sT[1]}, {sW}")
    lin(bh, sT[1], [(sT[1], 4096), (sT[4], 16384)], W_ST2)
    bh(f"s_lshl_b32 {sB[4]}, {sW}, 13")
    lin(bh, sB[3], [(sT[4], 1 << 17), (sT[5], 1 << 16), (sB[4], 1)], W_Y)
    flagpoll(p, vL4, sT[0], F_Y, "v13", bh)
    stamp("gotY")
    for n in range(4):
        tst = p(f"buffer_load_dwordx4 {v(96+4*n,4)}, {vL16}, {sWS}, {sT[1]} offen offset:{1024*n} sc1")

    def y_items(pp):
        out = []
        for h2 in range(2):
            for n in range(4):
                q = Prog()
                if n == 0:
                    q(f"s_add_u32 m0, {sB[4]}, {L_YP[pp] + 4096*h2}")
                    q(f"s_xor_b32 {sB[2]}, {sB[3]}, {32768*pp + 4096*h2}")
                q(f"buffer_load_dwordx4 {vL16}, {sWS}, {sB[2]} offen offset:{1024*n} sc1 lds")
                out.append(q.L)
        return out
    yi = [y_items(pp) for pp in range(4)]
    yl = [yi[pp][-1][-1] for pp in range(4)]
    for it in yi[0]:
        p.ext(it)
    p.wv(tst)
    p("s_barrier")
    q = Prog()
    gu_read(q, G2a)
    q("v_pk_add_f32 v[96:97], v[96:97], v[100:101]")
    q("v_pk_add_f32 v[98:99], v[98:99], v[102:103]")
    q("v_pk_add_f32 v[104:105], v[104:105], v[108:109]")
    q("v_pk_add_f32 v[106:107], v[106:107], v[110:111]")
    q("v_pk_add_f32 v[96:97], v[96:97], v[104:105]")
    q("v_pk_add_f32 v[98:99], v[98:99], v[106:107]")
    q("v_permlane32_swap_b32 v96, v98")
    q("v_permlane32_swap_b32 v97, v99")
    q("v_add_f32 v96, v96, v98")
    q("v_add_f32 v97, v97, v99")
    q("v_permlane16_swap_b32 v96, v97")
    q("v_add_f32 v96, v96, v97")
    q("v_mul_f32 v96, 0x3b000000, v96")
    q("v_mov_b32_dpp v97, v96 row_ror:8 row_mask:0xf bank_mask:0xf")
    q("v_fma_f32 v97, -v96, v96, v97")
    q("v_max_f32 v97, 0, v97")
    q("v_add_f32 v97, 0x3727c5ac, v97")
    q("v_rsq_f32 v98, v97")
    q("v_sub_f32 v96, 0, v96")
    q("v_mul_f32 v97, v97, v98")
    q("v_cvt_pk_bf16_f32 v100, v96, v96")
    q("v_cvt_pk_bf16_f32 v104, v97, v97")
    q("v_and_b32 v105, 0xffff0000, v100")
    q("v_and_b32 v104, 0xffff0000, v104")
    q("v_sub_f32 v96, v96, v105")
    q("v_sub_f32 v97, v97, v104")
    q("v_cvt_pk_bf16_f32 v101, v96, v104")
    q("v_cvt_pk_bf16_f32 v102, v104, v97")
    q("v_mov_b32 v103, 0")
    q("v_mul_f32 v99, v98, v98")
    C1 = -2.0 * 0.7978845608028654 * 1.4426950408889634
    C3 = C1 * 0.044715
    q(f"v_mul_f32 v104, {f2h(C1)}, v98")
    q(f"v_mul_f32 v105, {f2h(C3)}, v98")
    q("v_mul_f32 v105, v105, v99")
    q(f"v_and_b32 v14, 7, {vL}")
    q(f"v_lshl_add_u32 v14, v14, 2, {vQ}")
    q(f"s_lshl_b32 {sT[0]}, {sW}, 5")
    q(f"v_add_u32 v14, {sT[0]}, v14")
    q(f"v_lshlrev_b32 v15, 4, v14")
    q(f"v_add_u32 v15, {L_EXT}, v15")
    q(f"v_lshlrev_b32 v16, 3, v14")
    q(f"v_add_u32 v16, {L_KC}, v16")
    q(f"v_lshlrev_b32 v17, 2, v14")
    q(f"v_add_u32 v17, {L_RS2}, v17")
    ut_part(q, [ch for ch, la in G2a], False)
    p.ext(sprinkle(q, g2b, 0, opt("g2s", 8)))
    p("s_mov_b32 exec_lo, 0x00ff00ff")
    p("s_mov_b32 exec_hi, 0x00ff00ff")
    p("ds_write_b128 v15, v[100:103]")
    p("ds_write_b64 v16, v[104:105]")
    p("ds_write_b32 v17, v99")
    p("s_mov_b64 exec, -1")
    p("s_barrier")
    stamp("g2a")
    for it in g2c + yi[1]:
        p.ext(it)
    tlast = (g2b + g2c)[-1][-1]
    vYA, vYB, vEX, vKA, vKX, vS1, vS3 = vL16, "v21", "v22", "v23", "v24", "v25", "v26"
    p(f"v_add_u32 {vYB}, 65536, {vL16}")
    p(f"v_add_u32 v20, {L_YP[0]}, {vL16}")
    p(f"v_lshlrev_b32 {vEX}, 4, {vD16}")
    p(f"v_add_u32 {vEX}, {L_EXT}, {vEX}")
    p(f"v_lshlrev_b32 {vKA}, 3, {vD16}")
    p(f"v_add_u32 {vKA}, {L_KC}, {vKA}")
    p(f"v_lshl_add_u32 {vKX}, {vHF}, 7, {vKA}")
    p(f"v_lshlrev_b32 v12, 4, {vD16}")
    p(f"v_lshl_add_u32 v12, {vHF}, 8, v12")
    p(f"v_and_b32 v13, 1, {vQ}")
    p(f"v_lshl_add_u32 {vS1}, v13, 9, v12")
    p(f"v_mul_u32_u24 v13, {ACT_RT}, v13")
    p(f"v_add_u32 {vS3}, v13, v12")
    sA1, sA3, sFA = sT[0], sT[1], sT[2]
    lin(p, sT[6], [(sT[4], 2), (sT[5], 1)])
    p(f"s_lshr_b32 {sA3}, {sW}, 1")
    lin(p, sA1, [(sT[6], 2 * ACT_RT), (sHP, 6144), (sA3, 3072)], W_ACT)
    p(f"s_and_b32 {sFA}, {sW}, 1")
    lin(p, sA3, [(sFA, 512), (sA1, 1)], 1024)
    lin(p, sA1, [(sA1, 1), (sFA, 2048)])
    p(f"s_and_b32 {sT[6]}, {sT[6]}, 3")
    lin(p, sFA, [(sT[6], 256), (sHP, 16), (sW, 4), (sFLG, 1)])
    p(f"s_lshl_b32 {sT[6]}, {sT[5]}, 1")
    p(f"s_sub_u32 {sT[6]}, 1, {sT[6]}")
    p(f"s_mul_i32 {sT[7]}, {sT[6]}, {2*ACT_RT}")
    vTE, vTE2, vA8b = "v57", "v58", "v0"
    lin(p, sB[1], [(sW, WDW)], L_WD)
    p(f"v_add_u32 {vTE}, {sB[1]}, {vTC}")
    p(f"v_xor_b32 {vTE2}, 512, {vTE}")
    p(f"s_lshl_b32 {sT[5]}, {sCC}, 7")
    p(f"v_add_u32 {vA8}, {sT[5]}, {vA8}")
    p(f"v_add_u32 {vA8b}, {8192-1024}, {vA8}")
    p(f"s_and_b32 {sT[5]}, {sCR}, 1")
    p(f"s_mul_i32 {sB[0]}, {sT[5]}, {6*16384}")
    p(f"s_lshl_b32 {sKS[0]}, {sW}, 10")
    p(f"s_lshr_b32 {sKS[1]}, {sW}, 1")
    p(f"s_mul_i32 {sKS[1]}, {sKS[1]}, 6144")
    p(f"s_add_u32 {sKS[1]}, {sKS[1]}, {sKS[0]}")
    for n in range(2):
        p(f"s_lshl4_add_u32 {sKS[2+n]}, {sKS[n]}, {sB[0]}")
    p(f"s_lshl_b32 {sB[0]}, {sB[0]}, 1")
    p(f"s_sub_u32 {sB[0]}, {6*16384}, {sB[0]}")
    p.wv(tlast)
    p("s_barrier")
    stamp("g2b")
    gu_read(p, G2b + G2c)
    ut_part(p, [ch for ch, la in G2b + G2c], False)
    vAE = 44
    p(f"v_cmp_gt_u32 vcc, 16, {vL}")
    for T in range(3):
        u, t_ = vUT + 4 * T, vUT + 1 + 4 * T
        o = vAE + 4 * T
        p(f"v_cndmask_b32 v{u}, 0, v{u}, vcc")
        p(f"v_cndmask_b32 v{t_}, 0, v{t_}, vcc")
        p(f"v_cvt_pk_bf16_f32 v{o+1}, v{u}, v{t_}")
        unpack(p, v(o + 1), "v12", "v13")
        p(f"v_sub_f32 v{u}, v{u}, v12")
        p(f"v_sub_f32 v{t_}, v{t_}, v13")
        p(f"v_cvt_pk_bf16_f32 v{o}, v12, v{u}")
        p(f"v_cvt_pk_bf16_f32 v{o+2}, v{t_}, v13")
        p(f"v_mov_b32 v{o+3}, 0")
    stamp("ut")

    def wd_reg(slot, ct):
        n = 8 * slot + 4 * ct
        return ("a", 192 + n) if n < 64 else ("v", 144 + n - 64)

    def rg(rc, cn, off=0):
        return (a if rc[0] == "a" else v)(rc[1] + off, cn)
    wd_issue, wd_collect = [], []
    for n in range(22):
        q = Prog()
        if n == 11:
            q(f"s_add_u32 {sKS[2]}, {sKS[2]}, {sB[0]}")
            q(f"s_add_u32 {sKS[3]}, {sKS[3]}, {sB[0]}")
        q(f"s_add_u32 m0, {sB[1]}, {2048*(n%6)}")
        q(f"s_add_u32 {sB[2]}, {sKS[2+kstep(n%11)[0]]}, {kstep(n%11)[1]*16384}")
        q(f"buffer_load_dwordx4 {vA8}, {sWD}, {sB[2]} offen lds")
        q2 = Prog()
        t = q2(f"buffer_load_dwordx4 {vA8b}, {sWD}, {sB[2]} offen offset:1024 lds")
        wd_issue.append((q.L, q2.L))
        its = []
        for ct in range(2):
            rc = wd_reg(n, ct)
            ad = vTE2 if ct else vTE
            for h in range(2):
                q = Prog()
                if not its:
                    q.wv(t)
                q(f"ds_read_b64_tr_b16 {rg(rc,2,2*h)}, {ad} offset:{2048*(n%6)+256*h}")
                its.append(q.L)
        wd_collect.append(its)

    vYF = 96

    def accreg(setn, tile, T):
        tab = [[80, 84, 88, 92, 32, 36], [120, 124, 128, 132, 136, 140]]
        return tab[setn][3 * tile + T]
    vKC = 12
    vP1 = 40
    vP3 = 28
    vE = [18, 19, 27, 56]

    def gelu_mul(q, g, u, kc, out):
        for e in range(4):
            q(f"v_mul_f32 v{vE[e]}, v{g+e}, v{g+e}")
        for e in range(4):
            q(f"v_fma_f32 v{vE[e]}, v{vE[e]}, v{kc+1}, v{kc}")
        for e in range(4):
            q(f"v_mul_f32 v{vE[e]}, v{vE[e]}, v{g+e}")
        for e in range(4):
            q(f"v_exp_f32 v{vE[e]}, v{vE[e]}")
            q(f"v_mul_f32 v{u+e}, v{g+e}, v{u+e}")
        for e in range(4):
            q(f"v_add_f32 v{vE[e]}, 1.0, v{vE[e]}")
        for e in range(4):
            q(f"v_rcp_f32 v{vE[e]}, v{vE[e]}")
        for e in range(4):
            q(f"v_mul_f32 v{u+e}, v{u+e}, v{vE[e]}")
        q(f"v_cvt_pk_bf16_f32 v{out}, v{u}, v{u+1}")
        q(f"v_cvt_pk_bf16_f32 v{out+1}, v{u+2}, v{u+3}")

    def d_main(pp):
        q = Prog()
        q.wv(yl[pp])
        q("s_barrier")
        steps = [(tile, ks) for tile in range(2) for ks in range(17)]
        rd = {}

        def yread(n):
            tile, ks = steps[n]
            rt = 2 * pp + tile
            r = v(vYF + 4 * (n % NS), 4)
            if ks == 16:
                return q(f"ds_read_b128 {r}, {vEX} offset:{256*rt}")
            ad, o = [("v20", 0), (vYA, 0), (vYA, 32768), (vYB, 0)][pp]
            return q(f"ds_read_b128 {r}, {ad} offset:{o+16384*tile+1024*ks}")
        for n in range(4):
            rd[n] = yread(n)
        for n, (tile, ks) in enumerate(steps):
            if n + 4 < len(steps):
                rd[n + 4] = yread(n + 4)
            q.wl(rd[n])
            for T in range(3):
                acc = accreg(pp & 1, tile, T)
                w_ = v(vAE + 4 * T, 4) if ks == 16 else a(12 * ks + 4 * T, 4)
                q(f"v_mfma_f32_16x16x32_bf16 {v(acc,4)}, {w_}, {v(vYF+4*(n%NS),4)}, {'0' if ks==0 else v(acc,4)}")
        return q

    def d_epi(pp):
        q = Prog()
        A = lambda tile, T: accreg(pp & 1, tile, T)
        q(f"ds_read_b64 {v(vKC,2)}, {vKA} offset:{256*pp}")
        q(f"ds_read_b64 {v(vKC+2,2)}, {vKA} offset:{256*pp+128}")
        t = q(f"ds_read_b64 {v(vKC+4,2)}, {vKX} offset:{256*pp}")
        for e in range(4):
            q(f"v_permlane32_swap_b32 v{A(0,2)+e}, v{A(1,2)+e}")
        q.wl(t)
        gelu_mul(q, A(0, 0), A(0, 1), vKC, vP1)
        gelu_mul(q, A(1, 0), A(1, 1), vKC + 2, vP1 + 2)
        q(f"v_permlane32_swap_b32 v{vP1}, v{vP1+2}")
        q(f"v_permlane32_swap_b32 v{vP1+1}, v{vP1+3}")
        q(f"buffer_store_dwordx4 {v(vP1,4)}, {vS1}, {sWS}, {sA1} offen{c.SD('a')}")
        q(f"s_add_u32 {sA1}, {sA1}, {ACT_RT}" if pp & 1 == 0 else f"s_sub_u32 {sA1}, {sA1}, {ACT_RT}")
        gelu_mul(q, A(0, 2), A(1, 2), vKC + 4, vP3 + 2 * (pp & 1))
        st = None
        if pp & 1:
            q(f"v_permlane16_swap_b32 v{vP3}, v{vP3+2}")
            q(f"v_permlane16_swap_b32 v{vP3+1}, v{vP3+3}")
            st = q(f"buffer_store_dwordx4 {v(vP3,4)}, {vS3}, {sWS}, {sA3} offen{c.SD('a')}")
            q(f"s_add_u32 {sA1}, {sA1}, {sT[7]}")
            q(f"s_add_u32 {sA3}, {sA3}, {sT[7]}")
        return q, st

    def at_mfma(lst, plan):
        out, n = [], 0
        for i in lst:
            out.append(i)
            if i.kind == "i" and i.t.startswith("v_mfma"):
                for it in plan.pop(n, []):
                    out.extend(it)
                n += 1
        for k in sorted(plan):
            for it in plan[k]:
                out.extend(it)
        return out
    plan = {}
    for n, it in enumerate(yi[2] + yi[3]):
        plan.setdefault(opt("ys", 5) * n, []).append(it)
    p.ext(at_mfma(d_main(0).L, plan))
    stamp("d0")
    q = Prog()
    for pp in range(1, 4):
        ep, st = d_epi(pp - 1)
        if pp == 3:
            f = Prog()
            publish(f, sFA, F_ACT, st1)
            f(f"s_xor_b32 {sFA}, {sFA}, 256")
            ep.L = ep.L[:40] + [f.L] + ep.L[40:]
        if st is not None:
            st1 = st
        if flag("noepi"):
            ep.L = [i for i in ep.L if isinstance(i, list) or not i.t.startswith("v_")]
        q.ext(merge(d_main(pp), ep, per=opt("eper", 1.6), start=3))
        if pp < 3:
            stamp(f"d{pp}", q)
    plan = {}
    WI, WL = opt("wi", 11), opt("wl", 5)
    for n in range(22):
        plan.setdefault(WI * n + 1, []).append(wd_issue[n][0])
        plan.setdefault(WI * n + 4, []).append(wd_issue[n][1])
        for k, it in enumerate(wd_collect[n]):
            plan.setdefault(WI * (n + WL) - 9 + 2 * k, []).append(it)
    if flag("nowd"):
        plan = {}
    if flag("nowdc"):
        plan = {k: [it for it in its if not it[-1].t.startswith("ds_")] for k, its in plan.items()}
    p.ext(at_mfma(q.L, plan))
    stamp("dMain")
    ep, st = d_epi(3)
    p.ext(ep)
    stamp("stAct")
    publish(p, sFA, F_ACT, st)
    stamp("pubAct")

    vEA = 80

    def eacc(rel):
        return v(vEA, 16) if rel == 0 else a(16 * (rel - 1), 16)
    lin(p, sT[4], [(sCR, 256), (sFLG, 1)])
    lin(p, sT[6], [(sT[3], 2 * ACT_RT)], W_ACT)
    p(f"s_lshr_b32 {sT[0]}, {sW}, 1")
    p(f"s_mul_i32 {sT[0]}, {sT[0]}, {ACT_RT}")
    p(f"v_add_u32 v20, {sT[0]}, {vL16}")
    p(f"s_sub_u32 {sT[0]}, {ACT_RT}, {sT[0]}")
    p(f"v_add_u32 v21, {sT[0]}, {vL16}")
    p(f"v_bfe_u32 v12, {vL}, 2, 3")
    p(f"v_lshlrev_b32 v12, 5, v12")
    p(f"v_and_b32 v13, 3, {vL}")
    p(f"v_lshl_add_u32 v12, v13, 2, v12")
    p(f"s_lshl_b32 {sT[0]}, {sT[5]}, 4")
    p(f"v_add_u32 v22, {sT[0]}, v12")
    p(f"v_xor_b32 v23, 16, v22")
    p(f"s_add_u32 {sT[2]}, {sT[6]}, {85*1024}")
    p(f"s_mul_i32 {sT[5]}, {sT[5]}, 6144")
    for half in range(2):
        p(f"s_add_u32 {sT[1]}, {sT[6]}, {sT[5]}")
        for n in range(2):
            p(f"s_add_u32 {sKS[2+n]}, {sKS[n]}, {sT[1]}")
        flagpoll(p, "v23" if half else "v22", sT[4], F_ACT, "v13")
        stamp(f"gotAct{half}")
        al = []
        for i_ in range(11):
            p(f"s_add_u32 {sT[0]}, {sKS[2+kstep(i_)[0]]}, {kstep(i_)[1]*1024}")
            if i_ == 10:
                p(f"s_min_u32 {sT[0]}, {sT[0]}, {sT[2]}")
            for rt in range(2):
                al.append(p(f"buffer_load_dwordx4 {a(64+4*(2*i_+rt),4)}, {'v21' if rt else 'v20'}, {sWS}, {sT[0]} offen sc1"))
        def wback():
            lin(p, sT[0], [(sJ, 4), (sW, 1)])
            p(f"s_cmp_eq_u32 {sT[0]}, {opt('wbw', 0)}")
            p(f"s_cbranch_scc1 E_WB{sfx}")
            p(f"buffer_load_dword {vJUNK}, off, {sWS}, {sT[4]}")
            p.label(f"E_WBR{sfx}")
            c.ool.label(f"E_WB{sfx}")
            c.ool("buffer_wbl2 sc1")
            c.ool(f"s_branch E_WBR{sfx}")
        if half == 1 and opt("wb", 0) == 1:
            wback()
        for i_ in range(11):
            for rt in range(2):
                p.wv(al[2 * i_ + rt])
                if half == 1 and opt("wb", 0) == 2 and i_ == 10 and rt == 1:
                    wback()
                for ct in range(2):
                    rel = 2 * rt + ct
                    first = half == 0 and i_ == 0
                    p(f"v_mfma_f32_32x32x16_bf16 {eacc(rel)}, {rg(wd_reg(11*half+i_,ct),4)}, {a(64+4*(2*i_+rt),4)}, {'0' if first else eacc(rel)}")
        p(f"s_sub_u32 {sT[5]}, 6144, {sT[5]}")
    stamp("eGemm")
    p("s_barrier")
    for rel in range(1, 4):
        p(f"s_xor_b32 {sT[0]}, {sW}, {rel}")
        p(f"s_mul_i32 {sT[0]}, {sT[0]}, 12288")
        p(f"v_add_u32 v{12+rel}, {sT[0]}, {vL16}")
    for rel in range(1, 4):
        for n in range(4):
            p(f"ds_write_b128 v{12+rel}, {a(16*(rel-1)+4*n,4)} offset:{4096*(rel-1)+1024*n}")
    p(f"s_mul_i32 {sT[0]}, {sW}, 12288")
    p(f"v_add_u32 v12, {sT[0]}, {vL16}")
    p(f"s_xor_b32 {sT[0]}, {sCR}, {sHP}")
    p(f"s_and_b32 {sT[0]}, {sT[0]}, 1")
    p(f"s_lshr_b32 {sT[1]}, {sW}, 1")
    lin(p, sT[0], [(sT[0], 256), (sT[1], 128)], L_RS2)
    p(f"v_lshl_add_u32 v16, {vR32}, 2, {sT[0]}")
    p("ds_read_b32 v16, v16")
    p(f"ds_read_b128 v[32:35], {vMV} offset:3072")
    p(f"ds_read_b128 v[36:39], {vMV} offset:3088")
    p("s_waitcnt lgkmcnt(0)")
    p("s_barrier")
    rr = []
    for rel in range(1, 4):
        for n in range(4):
            rr.append(p(f"ds_read_b128 {v(96+16*(rel-1)+4*n,4)}, v12 offset:{4096*(rel-1)+1024*n}"))
    for e in range(8):
        unpack(p, v(32 + e), v(40 + 2 * e), v(41 + 2 * e))
    for e in range(8):
        p(f"v_pk_mul_f32 {v(40+2*e,2)}, {v(40+2*e,2)}, v[16:17] op_sel_hi:[1,0]")
    for rel in range(1, 4):
        for n in range(4):
            p.wl(rr[4 * (rel - 1) + n])
            for e in range(2):
                r = vEA + 4 * n + 2 * e
                p(f"v_pk_add_f32 {v(r,2)}, {v(r,2)}, {v(96+16*(rel-1)+4*n+2*e,2)}")
    for e in range(8):
        r = vEA + 2 * e
        p(f"v_pk_fma_f32 {v(r,2)}, {v(r,2)}, {v(40+2*e,2)}, {v(vX1+2*e,2)}")
    pack(p, vEA, 32, 8)
    p(f"buffer_store_dwordx4 v[32:35], {vXO}, {sOUT}, {sXO} offen{opt('osc', '')}")
    p(f"buffer_store_dwordx4 v[36:39], {vXO}, {sOUT}, {sXO} offen offset:16{opt('osc', '')}")
    if STAMPS:
        p("s_waitcnt vmcnt(0)")
        stamp("end")
        p("s_memrealtime s[56:57]")
        p("s_waitcnt lgkmcnt(0)")
        p("v_mov_b32 v12, 0")
        p("v_writelane_b32 v12, s56, 30")
        for i_ in range(c.nstamp + 1):
            p(f"v_writelane_b32 v12, s{SSTAMP0+2*i_}, {i_}")
        p(f"v_writelane_b32 v12, {sXCC}, 31")
        lin(p, sT[0], [("s2", 1024), (sW, 256)], W_STAMP)
        p(f"buffer_store_dword v12, {vL4}, {sWS}, {sT[0]} offen")
```

```python
from g3a import *
import g3b

stamp_names = []

class Ctx:
    pass


def build(SC, sfx):
    c = Ctx()
    c.SC, c.sfx = SC, sfx
    c.SD = lambda k: SC if SC else (" nt" if k in opt("nts", "") else "")
    p = c.p = Prog()
    c.ool = Prog()
    c.nstamp = 0
    names = []

    def stamp(name, q=None):
        q = q or p
        if not STAMPS or (want is not None and name not in want):
            return
        k = SSTAMP0 + 2 + 2 * c.nstamp
        if k + 1 > 101:
            return
        q(f"s_memtime s[{k}:{k+1}]")
        c.nstamp += 1
        names.append(name)
    c.stamp = stamp

    def polled(q, issue, check, behind=None):
        lp, lc, lr = q.newlabel("PP"), q.newlabel("PC"), q.newlabel("PR")
        q(f"s_mov_b32 {sCNT}, {SPIN}")
        t = issue(q)
        if behind:
            q.ext(behind)
        q.wv(t)
        q.label(lp)
        check(q)
        q(f"s_cbranch_vccnz {lr}")
        q.label(lc)
        o = c.ool
        o.label(lr)
        o(f"s_sub_u32 {sCNT}, {sCNT}, 1")
        o(f"s_cbranch_scc1 {lc}")
        o("s_nop 7")
        issue(o)
        o("s_waitcnt vmcnt(0)")
        o(f"s_branch {lp}")
    c.polled = polled

    def flagpoll(q, vaddr, soff, off, vtmp, behind=None):
        polled(q, lambda z: z(f"buffer_load_dword {vtmp}, {vaddr}, {sWS}, {soff} offen offset:{off} sc1"),
               lambda z: z(f"v_cmp_ne_u32 vcc, {sTAG}, {vtmp}"), behind)
    c.flagpoll = flagpoll

    def publish(q, soff, off, wait):
        q.wv(wait)
        q("s_mov_b64 exec, 1")
        q(f"buffer_store_dword {vTAG}, off, {sWS}, {soff} offset:{off}{SC}")
        q("s_mov_b64 exec, -1")
    c.publish = publish

    vTQ = "v22"

    def touch(q, srd, soff, lanes, fl="", va=vTQ):
        q(f"s_mov_b64 exec, {hex((1 << lanes) - 1)}")
        t = q(f"buffer_load_dword {vJUNK}, {va}, {srd}, {soff} offen{fl}")
        return t

    def touches(q, which, va, t0="s6", t1="s7"):
        for n in which:
            if n == "gu":
                q(f"s_lshr_b32 {t1}, {sW}, 1")
                lin(q, t0, [("s2", 5504), (t1, 22 * 128)], tmp=t1)
                touch(q, sGU, t0, 22, va=va)
            if n == "wo":
                lin(q, t0, [("s2", 2048), (sW, 512)], tmp=t1)
                touch(q, sWO, t0, 4, va=va)
            if n == "wd":
                lin(q, t0, [("s2", 5504), (sW, 11 * 128)], tmp=t1)
                touch(q, sWD, t0, 11, va=va)
            if n in ("o", "act"):
                per = 2048 if n == "o" else 3584
                q(f"s_lshr_b32 {t0}, {sJ}, 2")
                lin(q, t0, [(t0, ACT_RT), (sG, 8 * ACT_RT), (sW, per)], W_O if n == "o" else W_ACT + 32768, tmp=t1)
                q(f"s_and_b32 {t1}, {sJ}, 3")
                lin(q, t0, [(t0, 1), (t1, 4 * per)], tmp=t1)
                touch(q, sWS, t0, per // 128, opt("wsfl", ""), va=va)
            if n == "st":
                lin(q, t0, [(sG, 32768), (sJ, 1024), (sW, 256)], W_ST2, tmp=t1)
                touch(q, sWS, t0, 2, opt("wsfl", ""), va=va)
        if which:
            q("s_mov_b64 exec, -1")
    c.touches = touches
    c.tplan = dict(x.split(":") for x in opt("tp", "a:gu+wo+wd+o+st,c:act").split(","))
    c.tp = lambda key: c.tplan.get(key, "").split("+") if c.tplan.get(key) else []

    p(f"s_cmpk_ge_u32 s2, 256")
    p(f"s_cbranch_scc1 END")
    pC, pWM, pX, pWQ, pWS = "s[28:29]", "s[30:31]", "s[4:5]", "s[6:7]", "s[36:37]"
    p("s_load_dwordx4 s[28:31], s[0:1], 64")
    p("s_load_dwordx4 s[4:7], s[0:1], 0")
    p("s_load_dwordx2 s[36:37], s[0:1], 96")
    if STAMPS:
        p(f"s_memrealtime s[{SSTAMP0}:{SSTAMP0+1}]")
    stamp("start")
    p("s_getpc_b64 s[56:57]")
    p("s_and_b32 s58, s2, -8")
    p("v_lshrrev_b32 v12, 5, v0")
    p("v_add_lshl_u32 v12, v12, s58, 1")
    p("v_mad_u64_u32 v[12:13], vcc, v12, 64, s[56:57]")
    p(f"v_lshrrev_b32 v14, 6, v0")
    p(f"global_load_dword {vJUNK}, v[12:13], off")
    vAM, vCA, vMR, vXA, vGA, vRA, vHS, vASW, vASR, vAW, vKVA = "v20", "v21", "v23", "v24", "v25", "v26", "v27", "v40", "v41", "v31", "v0"
    sSLOT, sCGP, sQT = sT[4], sT[5], sT[6]
    p(f"v_readfirstlane_b32 {sW}, v14")
    p(f"v_lshrrev_b32 v16, 3, v0")
    p(f"v_and_b32 v15, 7, v0")
    p(f"s_and_b32 {sG}, s2, 7")
    p(f"s_lshr_b32 {sJ}, s2, 3")
    p(f"s_and_b32 {sQT}, s2, 3")
    p(f"s_and_b32 {sT[0]}, s2, 4")
    p(f"s_lshl3_add_u32 {sCGP}, {sT[0]}, {sJ}")
    p(f"s_lshl_b32 {sT[0]}, {sQT}, 5")
    p(f"v_add_u32 v17, {sT[0]}, v16")
    p(f"v_lshlrev_b32 {vCA}, 3, v17")
    p(f"v_mul_u32_u24 v17, {4*6144}, v17")
    p(f"s_lshl3_add_u32 {sT[0]}, {sCGP}, 192")
    p(f"v_add_lshl_u32 v18, v15, {sT[0]}, 4")
    p(f"v_add_u32 {vAM}, v17, v18")
    p(f"v_add_u32 v17, 12288, {vAM}")
    p(f"s_lshl_b32 {sSLOT}, {sG}, 5")
    p(f"s_add_u32 {sSLOT}, {sSLOT}, {sJ}")
    p(f"s_lshl_b32 {sT[0]}, {sSLOT}, 13")
    p(f"v_lshl_add_u32 v12, v0, 4, {sT[0]}")
    p(f"v_add_u32 v13, 4096, v12")
    p(f"s_mul_i32 {sT[1]}, {sW}, {XROW}")
    p(f"s_add_u32 m0, {sT[1]}, {L_X}")
    p(f"v_lshrrev_b32 v19, 2, v0")
    p(f"v_min_u32 v18, 47, v19")
    p(f"s_mul_i32 {sT[1]}, s2, 48")
    p(f"v_add_lshl_u32 v18, v18, {sT[1]}, 7")
    assert W_H == 1 << 21
    p(f"s_bitset1_b32 {sT[0]}, 21")
    p(f"v_lshl_add_u32 v19, v19, 7, {sT[0]}")
    p(f"s_cmp_ge_u32 {sCGP}, 48")
    p("s_waitcnt lgkmcnt(0)")
    p(f"s_load_dword {sTAG}, {pWS}, {W_EPOCH}")
    stamp("kernarg")
    p(f"s_cbranch_scc1 A_NOJOB")
    p.rb()
    tc = p(f"global_load_dwordx2 v[32:33], {vCA}, {pC}")
    for n in range(4):
        twm = p(f"global_load_dwordx4 {v(64+4*n,4)}, {(vAM, 'v17')[n>>1]}, {pWM} offset:{(-3072, 3072)[n&1]} nt")
    p.re_()
    p.label("A_NOJOB")
    nfirst = len(p.L)
    p(f"global_load_lds_dwordx4 v12, {pX} nt")
    p(f"s_addk_i32 m0, {4*XROW}")
    if opt("wq0", 1):
        p(f"global_load_dword {vJUNK}, v18, {pWQ}")
    tx = p(f"global_load_lds_dwordx4 v13, {pX} nt")
    hto = Prog()
    hto(f"global_load_dword {vJUNK}, v19, {pWS} nt")
    if opt("ht", 0) == 0:
        p.ext(hto)
    stamp("issued")
    p.raw("B0END:")
    for s_, off in ((sPHI, 16), (sWO, 24), (sWG, 40), (sWU, 48), (sWD, 56), (sOUT, 80)):
        lo = srd_lo(s_)
        p(f"s_load_dwordx2 s[{lo}:{lo+1}], s[0:1], {off}")
    p(f"s_mov_b64 s[8:9], {pWQ}")
    for s_, nb in ((sWS, WS_BYTES), (sWQKV, 512 * 3072)):
        lo = srd_lo(s_)
        p(f"s_mov_b32 s{lo+2}, {nb}")
        p(f"s_mov_b32 s{lo+3}, 0x20000")
    p(f"v_and_b32 {vL}, 63, v0")
    p(f"s_lshr_b32 {sRB}, {sJ}, 4")
    p(f"s_and_b32 {sHP}, {sJ}, 15")
    p(f"s_lshr_b32 {sCR}, {sJ}, 3")
    p(f"s_and_b32 {sCC}, {sJ}, 7")
    p(f"v_lshlrev_b32 {vL16}, 4, {vL}")
    p(f"v_lshlrev_b32 {vTQ}, 7, {vL}")
    p(f"v_and_b32 {vR32}, 31, {vL}")
    p(f"v_lshrrev_b32 {vHF}, 5, {vL}")
    p(f"v_lshrrev_b32 {vQ}, 4, {vL}")
    p(f"v_and_b32 {vD16}, 15, {vL}")
    p(f"v_lshrrev_b32 v14, 3, {vL}")
    p(f"v_lshrrev_b32 v12, 2, {vL}")
    p(f"v_mul_u32_u24 v12, 3072, v12")
    p(f"v_and_b32 v13, 3, {vL}")
    p(f"v_lshl_add_u32 {vAW}, v13, 4, v12")
    lin(p, sB[0], [(sW, 128 * 3072), (sHP, 64)])
    p(f"s_lshl_b32 {sB[1]}, {sW}, 13")

    def wq_item(part, n, fresh=False):
        q = Prog()
        if n & 3 == 0 or fresh:
            q(f"s_add_u32 m0, {sB[1]}, {(L_WQ, L_WK, L_WV)[part] + 1024*(n&~3)}")
        q(f"s_add_u32 {sB[2]}, {sB[0]}, {part*1024 + n*16*3072 - 1024*(n&3)}")
        q(f"buffer_load_dwordx4 {vAW}, {sWQKV}, {sB[2]} offen offset:{1024*(n&3)} lds")
        return q.L
    N0, N1, N2 = opt("n0", 0), opt("n1", 3), opt("n2", 10)
    kvd = [wq_item(1 + (n >> 3), n & 7, n == N0) for n in range(16)]
    qd = [wq_item(0, n) for n in range(8)]
    c.qd = qd
    for it in kvd[:N0]:
        p.ext(it)
    p(f"v_and_b32 v12, 1, {vL}")
    p(f"v_lshlrev_b32 v12, 4, v12")
    p(f"v_mov_b32 v13, 0xffff")
    p(f"v_lshlrev_b32 v12, v12, v13")
    p(f"v_lshrrev_b32 v13, 1, v15")
    for n in range(4):
        p(f"v_cmp_eq_u32 vcc, {n}, v13")
        if n == 0:
            lin(p, sT[0], [(sW, 512)], L_MRED)
        if n == 1:
            p(f"v_lshl_add_u32 {vMR}, {vHF}, 8, {sT[0]}")
            p(f"v_lshl_add_u32 {vMR}, v15, 5, {vMR}")
        if n == 2:
            p(f"v_and_b32 v17, 16, {vL}")
            p(f"v_add_u32 {vMR}, {vMR}, v17")
        if n == 3:
            lin(p, sT[3], [(sCGP, 256), (sQT, 12288)], W_MODP)
        p(f"v_cndmask_b32 v{36+n}, 0, v12, vcc")
    p(f"s_getreg_b32 {sXCC}, hwreg(HW_REG_XCC_ID, 0, 4)")
    lin(p, sT[0], [(sSLOT, 128)], W_RDY)
    for s_, nb in ((sWO, 512 * 1024), (sWG, 512 * 2752), (sWU, 512 * 2752), (sWD, 1376 * 1024), (sOUT, 2048 * 1024), (sGU, 512 * 2752)):
        lo = srd_lo(s_)
        p(f"s_mov_b32 s{lo+2}, {nb}")
        p(f"s_mov_b32 s{lo+3}, 0x20000")
    p(f"v_mov_b32 v81, {sXCC}")
    p(f"s_cmp_eq_u32 {sW}, 1")
    p(f"s_cselect_b32 {sT[0]}, {sT[0]}, 0x7fff0000")
    p(f"s_add_u32 {sB[4]}, {sT[0]}, {W_RDY2-W_RDY}")
    stamp("pretag")
    p("s_waitcnt lgkmcnt(0)")
    p(f"s_add_u32 {sTAG}, {sTAG}, 0x9E3779B1")
    p(f"v_mov_b32 v80, {sTAG}")
    p("s_mov_b64 exec, 1")
    p(f"buffer_store_dwordx2 v[80:81], off, {sWS}, {sT[0]} sc1")
    p("s_mov_b64 exec, -1")
    p(f"v_mov_b32 {vTAG}, {sTAG}")
    for n in range(4):
        p(f"s_bfe_u32 {sTB[n]}, {sTAG}, {hex(0x80000 + 8*n)}")
    lo, lg, lu = srd_lo(sGU), srd_lo(sWG), srd_lo(sWU)
    p(f"s_bitcmp0_b32 {sW}, 0")
    p(f"s_cselect_b64 s[{lo}:{lo+1}], s[{lg}:{lg+1}], s[{lu}:{lu+1}]")
    if opt("ht", 0) == 1:
        p.ext(hto)
    touches(p, c.tp("s"), vTQ)
    ncommon = sum(1 for i in p.L[nfirst:] if i.kind == "i" and i.t.startswith(("buffer_", "global_")))
    stamp("tag")

    p(f"s_cmp_ge_u32 {sCGP}, 48")
    p(f"s_cbranch_scc1 A_NOJOB2")
    p.rb()
    p(f"s_waitcnt vmcnt({ncommon+4})")
    unpack(p, "v32", "v44", "v45")
    unpack(p, "v33", "v46", "v47")
    for r in range(4):
        p(f"v_mul_f32 v{48+r}, 0xbfb8aa3b, v{44+r}")
    for r in range(4):
        p(f"v_exp_f32 v{48+r}, v{48+r}")
    for r in range(4):
        p(f"v_add_f32 v{48+r}, 1.0, v{48+r}")
    for r in range(4):
        p(f"v_rcp_f32 v{52+r}, v{48+r}")
    for r in range(4):
        p(f"v_min_f32 v{48+r}, 0x7f000000, v{48+r}")
    for r in range(4):
        p(f"v_mul_f32 v{96+r}, v{44+r}, v{52+r}")
    for r in range(4):
        p(f"v_fma_f32 v{44+r}, -v{96+r}, v{48+r}, v{44+r}")
    for r in range(4):
        p(f"v_fma_f32 v{44+r}, v{44+r}, v{52+r}, v{96+r}")
    for r in range(4):
        p(f"v_cvt_pk_bf16_f32 v{44+r}, v{44+r}, v{44+r}")
    for n in range(4):
        for r in range(4):
            p(f"v_and_b32 v{100+4*n+r}, v{44+n}, v{36+r}")
    stamp("silu")
    for n in range(4):
        p(f"s_waitcnt vmcnt({ncommon+3-n})")
        p(f"v_mfma_f32_16x16x32_bf16 v[96:99], {v(100+4*n,4)}, {v(64+4*n,4)}, {'0' if n==0 else 'v[96:99]'}")
    stamp("wmod")
    p("s_mov_b32 exec_lo, 0x00ff00ff")
    p("s_mov_b32 exec_hi, 0xff00ff00")
    p(f"ds_write_b128 {vMR}, v[96:99]")
    p("s_mov_b64 exec, -1")
    p(f"s_cmp_eq_u32 {sW}, 0")
    p("s_waitcnt lgkmcnt(0)")
    p("s_barrier")
    p(f"s_cbranch_scc0 A_NOJOB2")
    p("s_mov_b64 exec, 0xffff")
    rr = [p(f"ds_read_b128 {v(96+4*n,4)}, {vL16} offset:{L_MRED+256*n}") for n in range(8)]
    p("v_mov_b32 v12, 0xffffff00")
    for n in range(1, 8):
        p.wl(rr[n])
        p(f"v_pk_add_f32 v[96:97], v[96:97], {v(96+4*n,2)}")
        p(f"v_pk_add_f32 v[98:99], v[98:99], {v(98+4*n,2)}")
    for r in range(4):
        p(f"v_and_or_b32 v{96+r}, v{96+r}, v12, {sTB[r]}")
    p(f"buffer_store_dwordx4 v[96:99], {vL16}, {sWS}, {sT[3]} offen sc1")
    p("s_mov_b64 exec, -1")
    p.flush()
    p.re_()
    p.label("A_NOJOB2")
    stamp("pubM")
    if opt("ht", 0) == 2:
        p.ext(hto)
    lin(p, sT[0], [(sG, 1 << 18), (sCR, 1 << 16), (sCC, 128)])
    p(f"v_lshl_add_u32 v12, v15, 4, {sT[0]}")
    p(f"v_lshl_add_u32 v12, v16, 10, v12")
    lin(p, sT[1], [(sW, 1024)], L_XT)
    p(f"s_mov_b32 m0, {sT[1]}")
    p(f"v_add_u32 v13, 32768, v12")
    p(f"global_load_lds_dwordx4 v12, {pX}{opt('xtfl', '')}")
    p(f"s_addk_i32 m0, 4096")
    lin(p, sFLG, [(sG, 4096)], W_FL)
    p(f"global_load_lds_dwordx4 v13, {pX}{opt('xtfl', '')}")
    lin(p, sT[0], [(sJ, 128), (sFLG, 1)])
    touch(p, sWS, sT[0], 1)
    lin(p, sT[0], [(sW, 256)], L_WPHI)
    lin(p, sT[1], [(sHP, 1024), (sW, 256)])
    p(f"s_mov_b32 m0, {sT[0]}")
    p("s_mov_b64 exec, 0xffff")
    p(f"v_add_u32 v12, {sT[1]}, {vL16}")
    p(f"global_load_lds_dwordx4 v12, {sPHI}")
    p("s_mov_b64 exec, -1")
    lin(p, sT[0], [(sHP, 64), (sW, 16), (sG, 2), (sRB, 1)])
    lin(p, sT[1], [(sT[0], 128)], W_Z)
    lin(p, sT[0], [(sT[0], 512)], W_KV)
    p(f"v_lshl_add_u32 v12, {vHF}, 8, {sT[0]}")
    p(f"v_lshl_add_u32 v12, {vD16}, 4, v12")
    p(f"v_lshl_add_u32 v13, {vHF}, 4, {sT[1]}")
    p(f"v_cmp_eq_u32 vcc, 0, v17")
    for r in range(44, 48):
        p(f"v_mov_b32 v{r}, -1")
    p(f"v_cndmask_b32 {vKVA}, v13, v12, vcc")
    p("s_mov_b32 exec_lo, 0x1ffff")
    p("s_mov_b32 exec_hi, 0x1ffff")
    p(f"buffer_store_dwordx4 v[44:47], {vKVA}, {sWS}, 0 offen sc1")
    p("s_mov_b64 exec, -1")
    touches(p, c.tp("j"), vTQ)
    q = Prog()
    q(f"s_mov_b32 {sL2E}, 0x3fb8aa3b")
    q(f"v_lshlrev_b32 {vL4}, 2, {vL}")
    q(f"v_mul_u32_u24 v12, {XROW}, v15")
    q(f"v_lshl_add_u32 {vXA}, v14, 4, v12")
    q(f"v_lshlrev_b32 v12, 4, {vR32}")
    q(f"v_lshl_add_u32 {vGA}, {vHF}, 11, v12")
    q(f"v_lshlrev_b32 v12, 4, v15")
    q(f"v_lshl_add_u32 {vHS}, v14, 9, v12")
    lin(q, sT[0], [(sW, 1024)], L_AS)
    q(f"v_add_u32 {vASW}, {sT[0]}, {vL16}")
    q(f"v_lshl_add_u32 {vASR}, v14, 5, {sT[0]}")
    q(f"v_cvt_f32_u32 v42, {vHF}")
    q(f"v_mov_b32 v43, v42")
    lin(q, sT[0], [(sG, 4096), (sW, 1024)], W_RDY)
    q(f"v_lshl_add_u32 {vRA}, v15, 7, {sT[0]}")
    cplan = dict(x.split(":") for x in opt("cp", "x:,m:BRXG").split(","))
    c.cplan = cplan
    for ch in cplan.get("x", ""):
        g3b.constants(q, ch)
    p.ext(sprinkle(q, kvd[N0:N1], 0, 8))
    stamp("preX")
    p.wv(tx)
    p("s_barrier")
    stamp("gotX")
    touches(p, c.tp("a"), vTQ)
    q = Prog()
    rr = [q(f"ds_read_b128 {v(128+4*n,4)}, {vXA} offset:{L_X+128*n}") for n in range(8)]
    q(f"s_lshl_b32 {sT[0]}, {sW}, 8")
    q(f"v_add_u32 v12, {sT[0]}, {vXA}")
    ro = [q(f"ds_read_b128 {v(160+4*n,4)}, v12 offset:{L_X+128*n}") for n in range(2)]
    q("v_mov_b32 v13, 0x3f803f80")
    for r in range(44, 48):
        q(f"v_mov_b32 v{r}, 0")
    for n in range(8):
        q.wl(rr[n])
        for e in range(4):
            x = 128 + 4 * n + e
            q(f"v_dot2c_f32_bf16 v{44+(e&1)}, v{x}, v13")
            q(f"v_dot2c_f32_bf16 v{46+(e&1)}, v{x}, v{x}")
    q.wl(ro[1])
    for e in range(8):
        unpack(q, v(160 + e), v(168 + 2 * e), v(169 + 2 * e))
    q("v_add_f32 v44, v44, v45")
    q("v_add_f32 v46, v46, v47")
    for r in (44, 46):
        q(f"v_add_f32_dpp v{r}, v{r}, v{r} row_ror:8 row_mask:0xf bank_mask:0xf")
    for sw in ("v_permlane16_swap_b32", "v_permlane32_swap_b32"):
        for r in (44, 46):
            q(f"v_mov_b32 v{r+1}, v{r}")
        for r in (44, 46):
            q(f"{sw} v{r+1}, v{r}")
        for r in (44, 46):
            q(f"v_add_f32 v{r}, v{r}, v{r+1}")
    q("v_mul_f32 v44, 0x3b000000, v44")
    q("v_mul_f32 v46, 0x3b000000, v46")
    q("v_fma_f32 v46, -v44, v44, v46")
    q("v_max_f32 v46, 0, v46")
    q("v_add_f32 v46, 0x3727c5ac, v46")
    q("v_rsq_f32 v45, v46")
    q("v_mul_f32 v44, v44, v45")
    for e in range(8):
        r = 168 + 2 * e
        q(f"v_pk_fma_f32 {v(r,2)}, {v(r,2)}, v[44:45], v[44:45] op_sel:[0,1,0] op_sel_hi:[1,1,0] neg_lo:[0,0,1] neg_hi:[0,0,1]")
    gcut = opt("gcut", 1000)
    statq = q.L[gcut:]
    p.ext(sprinkle(q.L[:gcut], kvd[N1:N2], 12, opt("n2s", 14)))
    lin(p, sT[0], [(sW, 512)], W_MODP)
    for n in range(1, 4):
        p(f"s_add_u32 {sT[n]}, {sT[0]}, {12288*n}")
    stamp("stats")

    def msum(z):
        for n in range(4):
            for r in range(4):
                z(f"v_xor_b32 v{64+4*n+r}, {sTB[r]}, v{64+4*n+r}")
        z("v_pk_add_f32 v[44:45], v[64:65], v[68:69]")
        z("v_pk_add_f32 v[46:47], v[66:67], v[70:71]")
        z("v_pk_add_f32 v[48:49], v[72:73], v[76:77]")
        z("v_pk_add_f32 v[50:51], v[74:75], v[78:79]")
        z("v_pk_add_f32 v[44:45], v[44:45], v[48:49]")
        z("v_pk_add_f32 v[46:47], v[46:47], v[50:51]")
        pack(z, 44, 48, 2)
        unpack(z, "v48", "v44", "v45")
        unpack(z, "v49", "v46", "v47")
        z("v_pk_add_f32 v[44:45], v[44:45], v[42:43]")
        z("v_pk_add_f32 v[46:47], v[46:47], v[42:43]")
        pack(z, 44, 48, 2)

    def tagor(z, first, n):
        z(f"v_or3_b32 v12, v{first}, v{first+1}, v{first+2}")
        k = first + 3
        while k + 1 < first + n:
            z(f"v_or3_b32 v12, v12, v{k}, v{k+1}")
            k += 2
        if k < first + n:
            z(f"v_or_b32 v12, v12, v{k}")
        z("v_and_b32 v12, 0xff, v12")

    def issue1(z):
        z(f"buffer_load_dwordx2 v[80:81], {vRA}, {sWS}, 0 offen sc1")
        for n in range(4):
            t = z(f"buffer_load_dwordx4 {v(64+4*n,4)}, {vGA}, {sWS}, {sT[n]} offen sc1")
        return t

    def check1(z):
        msum(z)
        unpack(z, "v48", "v44", "v45")
        unpack(z, "v49", "v46", "v47")
        z(f"ds_write_b128 {vASW}, v[44:47]")
        z(f"v_cmp_ne_u32 vcc, {sXCC}, v81")
        tagor(z, 64, 16)
        z(f"v_mov_b32 v13, vcc_lo")
        z(f"ds_write_b32 v52, v13")
        z(f"v_xor_b32 v13, {sTAG}, v80")
        z("v_or_b32 v12, v12, v13")
        z("v_cmp_ne_u32 vcc, 0, v12")
    bh = Prog()
    bh0 = Prog()
    touches(bh0, c.tp("m"), vTQ)
    bh.ext(statq)
    for ch in cplan.get("m", ""):
        g3b.constants(bh, ch)
    lin(bh, sT[4], [(sW, 4)], L_MODE)
    bh(f"v_mov_b32 v52, {sT[4]}")
    bh(f"v_mov_b32 v53, {L_MODE}")
    bh(f"s_lshr_b32 {sT[6]}, {sJ}, 2")
    bh(f"s_and_b32 {sT[5]}, {sJ}, 3")
    lin(bh, sT[4], [(sT[6], 32768), (sG, 262144), (sW, 8192), (sT[5], 128)], W_H)
    lin(bh, sB[3], [(sT[6], 128), (sT[5], 16), (sW, 4), (sFLG, 1)])
    bh(f"s_add_u32 {sT[5]}, {sT[4]}, 4096")
    N3 = opt("n3", 16)
    bh = sprinkle(bh, kvd[N2:N3] + [bh0.L], 4, opt("n3s", 20))
    polled(p, issue1, check1, bh)
    p("s_waitcnt lgkmcnt(0)")
    p("s_barrier")
    stamp("gotM")
    tm = p("ds_read_b128 v[44:47], v53")
    rr = []
    for n in range(2):
        for h in range(2):
            p(f"ds_read_b128 {v(96+16*n+4*h,4)}, {vASR} offset:{256*n+16*h}")
            rr.append(p(f"ds_read_b128 {v(104+16*n+4*h,4)}, {vASR} offset:{512+256*n+16*h}"))
    p.wl(tm)
    p("v_or3_b32 v44, v44, v45, v46")
    p("v_or_b32 v44, v44, v47")
    p(f"v_readfirstlane_b32 {sT[6]}, v44")
    for n in range(2):
        for h in range(2):
            p.wl(rr[2 * n + h])
            for e in range(2):
                r = 168 + 8 * n + 4 * h + 2 * e
                o = 16 * n + 4 * h + 2 * e
                p(f"v_pk_fma_f32 {v(r,2)}, {v(r,2)}, {v(104+o,2)}, {v(96+o,2)}")
        pack(p, 168 + 8 * n, 32 + 4 * n, 4)
        if n == 0:
            p(f"s_cmp_lg_u32 {sT[6]}, 0" if not flag("slow") else f"s_cmp_ge_u32 {sT[6]}, 0")
            p.flush()
            p("s_cbranch_scc1 SLOW")
            p.raw(";;SPLIT")
            c.ool.raw(";;SPLIT")
        th = p(f"buffer_store_dwordx4 {v(32+4*n,4)}, {vHS}, {sWS}, {sT[4+n]} offen{c.SD('h')}")
    stamp("stH")
    for n in range(4):
        p(f"s_add_u32 {sT[n]}, {sT[n]}, {3*2048}")
    p(f"s_and_b32 {sT[6]}, {sW}, 1")
    lin(p, sT[4], [(sT[6], 3 * 2048), (sCC, 256)], W_MODP + 2 * 2048)
    p(f"v_mul_u32_u24 v13, 12288, {vQ}")
    p(f"v_lshl_add_u32 v52, {vD16}, 4, v13")

    def issue2(z):
        for n in range(4):
            z(f"buffer_load_dwordx4 {v(64+4*n,4)}, {vGA}, {sWS}, {sT[n]} offen sc1")
        return z(f"buffer_load_dwordx4 v[80:83], v52, {sWS}, {sT[4]} offen sc1")

    def check2(z):
        msum(z)
        z("ds_write_b64 v53, v[48:49]")
        for r in range(4):
            z(f"v_xor_b32 v{80+r}, {sTB[r]}, v{80+r}")
        tagor(z, 64, 20)
        z("v_permlane32_swap_b32 v80, v82")
        z("v_permlane32_swap_b32 v81, v83")
        z("v_add_f32 v80, v80, v82")
        z("v_add_f32 v81, v81, v83")
        z("v_permlane16_swap_b32 v80, v81")
        z("v_add_f32 v80, v80, v81")
        z("v_cvt_pk_bf16_f32 v80, v80, v80")
        z("ds_write_b16 v54, v80")
        z("v_cmp_ne_u32 vcc, 0, v12")
    bh = Prog()
    lin(bh, sT[5], [(sW, 256)], L_MODL + 1024)
    bh(f"v_lshl_add_u32 v53, {vHF}, 10, {sT[5]}")
    bh(f"v_lshl_add_u32 v53, {vR32}, 3, v53")
    lin(bh, sT[5], [(sT[6], 3072), (sCC, 128)], L_MODL)
    bh(f"v_lshl_add_u32 v54, {vD16}, 3, {sT[5]}")
    bh(f"v_lshl_add_u32 v54, {vQ}, 1, v54")
    publish(bh, sB[3], F_H, th)
    stamp("pubH", bh)
    bh("s_mov_b64 exec, 1")
    bh(f"buffer_store_dword {vTAG}, off, {sWS}, {sB[4]} sc1")
    bh("s_mov_b64 exec, -1")
    for it in kvd[N3:]:
        bh.ext(it)
    bh(f"s_lshr_b32 {sT[5]}, {sW}, 1")
    lin(bh, sT[5], [(sT[5], 4096), (sT[6], 64)], L_XT)
    bh(f"v_lshl_add_u32 v12, {vR32}, 7, {sT[5]}")
    bh(f"v_lshl_add_u32 v12, {vHF}, 5, v12")
    bh("ds_read_b128 a[192:195], v12")
    bh("ds_read_b128 a[196:199], v12 offset:16")
    for ch in cplan.get("h", ""):
        g3b.constants(bh, ch)
    c.NQ0 = opt("nq0", 0)
    for it in qd[:c.NQ0]:
        bh.ext(it)
    c.touches(bh, c.tp("h"), vTQ)
    polled(p, issue2, check2, bh)
    stamp("gotM2")
    g3b.rest(c)
    p("s_endpgm")
    return p.finish(), c.ool.finish(), names, p.nnops


f_main, f_ool, names, nn = build("", "f")
s_main, s_ool, _, _ = build(" sc1", "s")
body = f_main + "\n" + f_ool + "\nSLOW:\n" + s_main.split(";;SPLIT")[1] + "\n" + s_ool.split(";;SPLIT")[1] + "\nEND:\n    s_endpgm\n"
body = body.replace(";;SPLIT\n", "")
ref = open(f"cdna_kernels/{NAME}.s.ref").read().split("\n")
head = []
for ln in ref:
    if ln.startswith("; @launch"):
        head.append("; @launch grid=(256,1,1) block=(256,1,1) lds=163840")
        continue
    head.append(ln)
    if ln.startswith(NAME + "_kernel:"):
        break
tail = f"""
.section .rodata,"a"
.p2align 6
.amdhsa_kernel {NAME}_kernel
  .amdhsa_next_free_vgpr 512
  .amdhsa_next_free_sgpr 102
  .amdhsa_accum_offset 256
  .amdhsa_group_segment_fixed_size 0
  .amdhsa_kernarg_size 104
  .amdhsa_user_sgpr_count 2
  .amdhsa_user_sgpr_kernarg_segment_ptr 1
  .amdhsa_system_sgpr_workgroup_id_x 1
.end_amdhsa_kernel
"""
open(OUTF, "w").write("\n".join(head) + "\n" + body + tail)
json.dump(dict(names=names if STAMPS else None, W_STAMP=W_STAMP, W_H=W_H, W_O=W_O, W_Y=W_Y, W_ACT=W_ACT, W_KV=W_KV, W_Z=W_Z, W_MODP=W_MODP, W_ST2=W_ST2,
               alias=not flag("noalias")), open(OUTF + ".json", "w")) if not OUTF.startswith("cdna_kernels") else None
print("written", OUTF, "lines", body.count("\n"), "nops", nn, "stamps", names)
```
